```python
import torch

def _softmax(x, axis=-1):
    return torch.softmax(x, dim=axis)
def _gelu(x):
    return torch.nn.functional.gelu(x, approximate="tanh")
def _silu(x):
    return torch.nn.functional.silu(x)
def _sigmoid(x):
    return torch.sigmoid(x)
def _layernorm(x, axis=-1, eps=1e-5):
    m = x.mean(dim=axis, keepdim=True)
    v = x.var(dim=axis, keepdim=True, unbiased=False)
    return (x - m) / torch.sqrt(v + eps)
def _scatter_add(tgt, idx, src, axis=0):
    return tgt.clone().index_add_(axis, idx, src)
def _segment_sum(src, seg, n):
    out = torch.zeros((n,) + src.shape[1:], dtype=src.dtype)
    return out.index_add_(0, seg, src)
def _pad(x, pw):
    flat = tuple(v for pair in reversed(pw) for v in pair)
    return torch.nn.functional.pad(x, flat)

kernel_name = 'interleave_layers__spectral_fnet__dense_activation_squared_relu__prompt'

def setup_inputs():

    _w = (lambda a: (lambda t: t.to(torch.bfloat16) if t.is_floating_point() else t)(torch.as_tensor(a)))
    def _A_setup():
        B, S, D = 1, 2048, 512
        ns = torch.arange(S)[:, None] * torch.arange(S)[None, :]
        nd = torch.arange(D)[:, None] * torch.arange(D)[None, :]
        Ws_re = torch.cos(-2.0 * torch.pi * ns / S).to(float)
        Ws_im = torch.sin(-2.0 * torch.pi * ns / S).to(float)
        Wd_re = torch.cos(-2.0 * torch.pi * nd / D).to(float)
        Wd_im = torch.sin(-2.0 * torch.pi * nd / D).to(float)
        return {
            "x": _w((lambda *s: torch.randn(*s, dtype=torch.bfloat16) * 0.05)(B, S, D)),
            "dft_seq_re": _w(Ws_re),
            "dft_seq_im": _w(Ws_im),
            "dft_hid_re": _w(Wd_re),
            "dft_hid_im": _w(Wd_im),
        }
    _A_in = _A_setup()

    def _B_setup():
        B, S, D, F = 1, 2048, 512, 1792
        return {
            "x": _w((lambda *s: torch.randn(*s, dtype=torch.bfloat16) * 0.05)(B, S, D)),
            "w1": _w((lambda *s: torch.randn(*s, dtype=torch.bfloat16) * 0.4)(D, F)),
            "b1": _w((lambda *s: torch.randn(*s, dtype=torch.bfloat16) * 0.4)(F)),
            "w2": _w((lambda *s: torch.randn(*s, dtype=torch.bfloat16) * 0.4)(F, D)),
            "b2": _w((lambda *s: torch.randn(*s, dtype=torch.bfloat16) * 0.4)(D)),
        }
    _B_in = _B_setup()

    return {
        "A_x": _A_in["x"],
        "A_dft_seq_re": _A_in["dft_seq_re"],
        "A_dft_seq_im": _A_in["dft_seq_im"],
        "A_dft_hid_re": _A_in["dft_hid_re"],
        "A_dft_hid_im": _A_in["dft_hid_im"],
        "B_x": _B_in["x"],
        "B_w1": _B_in["w1"],
        "B_b1": _B_in["b1"],
        "B_w2": _B_in["w2"],
        "B_b2": _B_in["b2"],
    }

def reference(A_x, A_dft_seq_re, A_dft_seq_im, A_dft_hid_re, A_dft_hid_im, B_x, B_w1, B_b1, B_w2, B_b2):
    def _A_ref(x, dft_seq_re, dft_seq_im, dft_hid_re, dft_hid_im):
        a = torch.einsum("bsd,ed->bse", x, dft_hid_re)
        b = torch.einsum("bsd,ed->bse", x, dft_hid_im)
        y = torch.einsum("ts,bse->bte", dft_seq_re, a) - torch.einsum("ts,bse->bte", dft_seq_im, b)
        return y

    def _B_ref(x, w1, b1, w2, b2):
        h = torch.einsum("bsd,df->bsf", x, w1) + b1
        zero = torch.zeros_like(h)
        r = torch.where(h > zero, h, zero)
        h = r * r
        out = torch.einsum("bsf,fd->bsd", h, w2) + b2
        return out

    x = A_x
    x = x + _A_ref(_layernorm(x, axis=-1), A_dft_seq_re, A_dft_seq_im, A_dft_hid_re, A_dft_hid_im)
    x = x + _B_ref(_layernorm(x, axis=-1), B_w1, B_b1, B_w2, B_b2)
    x = x + _A_ref(_layernorm(x, axis=-1), A_dft_seq_re, A_dft_seq_im, A_dft_hid_re, A_dft_hid_im)
    x = x + _B_ref(_layernorm(x, axis=-1), B_w1, B_b1, B_w2, B_b2)
    return x
```

```python
import sys

NAME = "interleave_layers__spectral_fnet__dense_activation_squared_relu__prompt"

S, D, F = 2048, 512, 1792

WS_ABT = 0x0000000
WS_H = 0x0400000
WS_X1 = 0x0B00000
WS_X2 = 0x0D00000
WS_X3 = 0x0F00000
WS_W1T = 0x1100000
WS_W2T = 0x1300000

P_AX, P_SRE, P_SIM, P_HRE, P_HIM, P_BX, P_W1, P_B1, P_W2, P_B2, P_OUT, P_DBG, P_WS = [16 + 2 * i for i in range(13)]


class K:
    def __init__(self, name):
        self.name = name
        self.L = []
        self.vmq = []
        self.lgq = []
        self.nlab = 0

    def e(self, s):
        self.L.append("    " + s)

    def c(self, s):
        self.L.append("    ; " + s)

    def label(self, l):
        self.L.append(l + ":")

    def newlab(self, p="L"):
        self.nlab += 1
        return f".{p}_{self.name}_{self.nlab}"

    def vm(self, s, tag):
        self.e(s)
        self.vmq.append(tag)

    def wait_vm(self, tag):
        idx = None
        for i, t in enumerate(self.vmq):
            if t == tag:
                idx = i
        if idx is None:
            return
        n = len(self.vmq) - 1 - idx
        assert n <= 63, n
        self.e(f"s_waitcnt vmcnt({n})")
        self.vmq = self.vmq[idx + 1:]

    def wait_vm_all(self):
        if self.vmq:
            self.e("s_waitcnt vmcnt(0)")
        self.vmq = []

    def lg(self, s, tag):
        self.e(s)
        self.lgq.append(tag)

    def wait_lg(self, tag):
        idx = None
        for i, t in enumerate(self.lgq):
            if t == tag:
                idx = i
        if idx is None:
            return
        n = len(self.lgq) - 1 - idx
        assert n <= 15, n
        self.e(f"s_waitcnt lgkmcnt({n})")
        self.lgq = self.lgq[idx + 1:]

    def wait_lg_all(self):
        if self.lgq:
            self.e("s_waitcnt lgkmcnt(0)")
        self.lgq = []

    def srd(self, d, ptr, off, nbytes):
        if off:
            self.e(f"s_add_u32 s{d}, s{ptr}, 0x{off:x}")
            self.e(f"s_addc_u32 s{d+1}, s{ptr+1}, 0")
        else:
            self.e(f"s_mov_b32 s{d}, s{ptr}")
            self.e(f"s_mov_b32 s{d+1}, s{ptr+1}")
        self.e(f"s_mov_b32 s{d+2}, 0x{nbytes:x}")
        self.e(f"s_mov_b32 s{d+3}, 0x00020000")

    def load_kernargs(self):
        self.e("s_load_dwordx16 s[16:31], s[0:1], 0")
        self.e("s_load_dwordx8 s[32:39], s[0:1], 64")
        self.e("s_load_dwordx2 s[40:41], s[0:1], 96")

    def text(self):
        return "\n".join(self.L)


def vr(a, n=1):
    return f"v{a}" if n == 1 else f"v[{a}:{a+n-1}]"


def ar(a, n=1):
    return f"a{a}" if n == 1 else f"a[{a}:{a+n-1}]"


def descriptor(name, nvgpr, nagpr, nsgpr=100):
    acc = (nvgpr + 3) // 4 * 4
    nfv = acc + nagpr if nagpr else nvgpr
    return f""".section .rodata,"a"
.p2align 6
.amdhsa_kernel {name}
  .amdhsa_next_free_vgpr {nfv}
  .amdhsa_next_free_sgpr {nsgpr}
  .amdhsa_accum_offset {acc}
  .amdhsa_group_segment_fixed_size 0
  .amdhsa_kernarg_size 104
  .amdhsa_user_sgpr_count 2
  .amdhsa_user_sgpr_kernarg_segment_ptr 1
  .amdhsa_system_sgpr_workgroup_id_x 1
  .amdhsa_float_denorm_mode_32 3
.end_amdhsa_kernel
.text
"""


def bf16_round_pair(k, dst, a, b):
    k.e(f"v_cvt_pk_bf16_f32 {vr(dst)}, {vr(a)}, {vr(b)}")


def unpack_pair(k, lo, hi, src):
    k.e(f"v_lshlrev_b32 {vr(lo)}, 16, {vr(src)}")
    k.e(f"v_and_b32 {vr(hi)}, 0xffff0000, {vr(src)}")


def gen_x(name, kind, x_ptr, x_off, transposer):
    k = K(name)
    A1 = kind == "A1"
    WN = 32 if A1 else 64
    nB = WN // 16
    NT = 8 if A1 else 7
    NWG = 32 * NT
    PB = 8 if A1 else 4
    KS = 16

    vLane, vT0, vT1, vT2, vT3 = 1, 2, 3, 4, 5
    vBoff = 10
    vLrd = 14
    vLwr = 18
    vXoff = 22
    vTmp = 24
    BF = 40
    XR = 104
    AF = 104
    EP = 168
    NV = 216

    k.label(name)
    end = k.newlab("end")
    k.load_kernargs()
    if transposer:
        tlab = k.newlab("tr")
        k.e(f"s_cmp_ge_u32 s2, {NWG}")
        k.e(f"s_cbranch_scc1 {tlab}")
    else:
        k.e(f"s_cmp_ge_u32 s2, {NWG}")
        k.e(f"s_cbranch_scc1 {end}")
    k.e("v_lshrrev_b32 v2, 6, v0")
    k.e("v_and_b32 v1, 63, v0")
    k.e("v_readfirstlane_b32 s3, v2")
    if A1:
        k.e("s_and_b32 s5, s2, 7")
        k.e("s_lshr_b32 s4, s2, 3")
    else:
        k.e("s_mul_i32 s4, s2, 0x4925")
        k.e("s_lshr_b32 s4, s4, 17")
        k.e("s_mul_i32 s6, s4, 7")
        k.e("s_sub_u32 s5, s2, s6")
    k.e("s_waitcnt lgkmcnt(0)")
    k.srd(44, x_ptr, x_off, S * D * 2)
    if A1:
        k.e("s_cmp_lt_u32 s5, 4")
        k.e(f"s_cselect_b32 s48, s{P_HRE}, s{P_HIM}")
        k.e(f"s_cselect_b32 s49, s{P_HRE+1}, s{P_HIM+1}")
        k.e(f"s_mov_b32 s50, 0x{D*D*2:x}")
        k.e("s_mov_b32 s51, 0x00020000")
        k.srd(52, P_WS, WS_ABT, 1024 * S * 2)
        k.e("s_and_b32 s6, s5, 3")
        k.e("s_lshl_b32 s6, s6, 7")
        k.e("s_lshl_b32 s7, s3, 5")
        k.e("s_add_u32 s6, s6, s7")
        k.e("s_lshl_b32 s61, s6, 10")
    else:
        k.srd(48, P_WS, WS_W1T, F * D * 2)
        k.srd(52, P_WS, WS_H, S * F * 2)
        k.srd(56, P_B1, 0, F * 2)
        k.e("s_lshl_b32 s6, s5, 8")
        k.e("s_lshl_b32 s7, s3, 6")
        k.e("s_add_u32 s6, s6, s7")
        k.e("s_lshl_b32 s61, s6, 10")
        k.e("s_lshl_b32 s63, s6, 1")
    k.e("s_lshl_b32 s60, s4, 16")
    k.e("v_and_b32 v2, 15, v1")
    k.e("v_lshrrev_b32 v3, 4, v1")
    k.e("v_lshlrev_b32 v4, 10, v2")
    k.e("v_lshl_add_u32 v4, v3, 4, v4")
    for j in range(nB):
        if j == 0:
            k.e(f"v_mov_b32 {vr(vBoff)}, v4")
        else:
            k.e(f"v_add_u32 {vr(vBoff+j)}, 0x{j*16*1024:x}, v4")
    for s in range(PB):
        for j in range(nB):
            d = BF + ((s % PB) * nB + j) * 4
            k.vm(f"buffer_load_dwordx4 {vr(d,4)}, {vr(vBoff+j)}, s[48:51], s61 offen offset:{s*64}", ("B", s))
    k.e("v_lshrrev_b32 v2, 2, v1")
    k.e("v_and_b32 v3, 3, v1")
    k.e("v_lshlrev_b32 v4, 10, v2")
    k.e("v_lshl_add_u32 v4, v3, 4, v4")
    k.e("s_lshl_b32 s6, s3, 14")
    k.e(f"v_add_u32 {vr(vXoff)}, s6, v4")
    for j in range(16):
        k.vm(f"buffer_load_dwordx4 {vr(XR+4*j,4)}, {vr(vXoff)}, s[44:47], s60 offen offset:{j*64}", ("X", j))
    k.e(f"v_lshlrev_b32 v5, 4, v3")
    k.e(f"v_sub_u32 v6, {vr(vXoff)}, v5")
    for jj in range(4):
        k.e(f"v_add_u32 v5, {4*jj}, v3")
        k.e("v_xor_b32 v5, v5, v2")
        k.e(f"v_lshl_add_u32 {vr(vLwr+jj)}, v5, 4, v6")
    k.e("v_and_b32 v2, 15, v1")
    k.e("v_lshrrev_b32 v3, 4, v1")
    for ss in range(4):
        k.e(f"v_add_u32 v5, {4*ss}, v3")
        k.e("v_xor_b32 v5, v5, v2")
        k.e("v_lshlrev_b32 v5, 4, v5")
        k.e(f"v_lshl_add_u32 {vr(vLrd+ss)}, v2, 10, v5")
    k.c("LayerNorm: pass 1 (mean)")
    T = vTmp
    k.e("s_mov_b32 s8, 0x3f803f80")
    for a in range(4):
        k.e(f"v_mov_b32 {vr(T+a)}, 0")
    for q in range(64):
        if q % 4 == 0:
            k.wait_vm(("X", q // 4))
        k.e(f"v_dot2c_f32_bf16 {vr(T+q%4)}, s8, {vr(XR+q)}")
    k.e("s_nop 2")
    k.e(f"v_add_f32 {vr(T)}, {vr(T)}, {vr(T+1)}")
    k.e(f"v_add_f32 {vr(T+2)}, {vr(T+2)}, {vr(T+3)}")
    k.e(f"v_add_f32 {vr(T)}, {vr(T)}, {vr(T+2)}")
    k.e("s_nop 1")
    k.e(f"v_add_f32_dpp {vr(T+1)}, {vr(T)}, {vr(T)} quad_perm:[1,0,3,2] row_mask:0xf bank_mask:0xf")
    k.e("s_nop 1")
    k.e(f"v_add_f32_dpp {vr(T)}, {vr(T+1)}, {vr(T+1)} quad_perm:[2,3,0,1] row_mask:0xf bank_mask:0xf")
    vMean = T + 4
    k.e(f"v_mul_f32 {vr(vMean)}, 0x3b000000, {vr(T)}")
    vNM = T + 6
    k.e(f"v_sub_f32 {vr(vNM)}, 0, {vr(vMean)}")
    k.e(f"v_sub_f32 {vr(vNM+1)}, 0, {vr(vMean)}")
    k.c("LayerNorm: pass 2 (variance)")
    vS = T + 8
    for a in range(4):
        k.e(f"v_mov_b32 {vr(vS+a)}, 0")
    U = T + 12
    for q in range(64):
        u = U + 2 * (q % 2)
        sacc = vS + 2 * (q % 2)
        unpack_pair(k, u, u + 1, XR + q)
        k.e(f"v_pk_add_f32 {vr(u,2)}, {vr(u,2)}, {vr(vNM,2)}")
        k.e(f"v_pk_fma_f32 {vr(sacc,2)}, {vr(u,2)}, {vr(u,2)}, {vr(sacc,2)}")
    k.e(f"v_add_f32 {vr(vS)}, {vr(vS)}, {vr(vS+1)}")
    k.e(f"v_add_f32 {vr(vS+2)}, {vr(vS+2)}, {vr(vS+3)}")
    k.e(f"v_add_f32 {vr(vS)}, {vr(vS)}, {vr(vS+2)}")
    k.e("s_nop 1")
    k.e(f"v_add_f32_dpp {vr(vS+1)}, {vr(vS)}, {vr(vS)} quad_perm:[1,0,3,2] row_mask:0xf bank_mask:0xf")
    k.e("s_nop 1")
    k.e(f"v_add_f32_dpp {vr(vS)}, {vr(vS+1)}, {vr(vS+1)} quad_perm:[2,3,0,1] row_mask:0xf bank_mask:0xf")
    k.e(f"v_mul_f32 {vr(vS)}, 0x3b000000, {vr(vS)}")
    w = vS + 1
    k.e(f"v_cvt_pk_bf16_f32 {vr(w)}, {vr(vS)}, {vr(vMean)}")
    k.e(f"v_lshlrev_b32 {vr(vS+2)}, 16, {vr(w)}")
    k.e(f"v_and_b32 {vr(vS+3)}, 0xffff0000, {vr(w)}")
    k.e(f"v_add_f32 {vr(vS+2)}, 0x3727c5ac, {vr(vS+2)}")
    k.e(f"v_cvt_pk_bf16_f32 {vr(w)}, {vr(vS+2)}, {vr(vS+2)}")
    k.e(f"v_lshlrev_b32 {vr(vS+2)}, 16, {vr(w)}")
    k.e(f"v_sqrt_f32 {vr(vS+2)}, {vr(vS+2)}")
    k.e("s_nop 0")
    k.e(f"v_cvt_pk_bf16_f32 {vr(w)}, {vr(vS+2)}, {vr(vS+2)}")
    k.e(f"v_lshlrev_b32 {vr(vS+2)}, 16, {vr(w)}")
    vR = T + 6
    k.e(f"v_rcp_f32 {vr(vR)}, {vr(vS+2)}")
    k.e("s_nop 0")
    k.e(f"v_mov_b32 {vr(vR+1)}, {vr(vR)}")
    vNC = T + 8
    k.e(f"v_mul_f32 {vr(vNC)}, {vr(vS+3)}, {vr(vR)}")
    k.e(f"v_sub_f32 {vr(vNC)}, 0, {vr(vNC)}")
    k.e(f"v_mov_b32 {vr(vNC+1)}, {vr(vNC)}")
    k.c("LayerNorm: pass 3 (normalise, to LDS)")
    for q in range(64):
        u = U + 2 * (q % 2)
        unpack_pair(k, u, u + 1, XR + q)
        k.e(f"v_pk_fma_f32 {vr(u,2)}, {vr(u,2)}, {vr(vR,2)}, {vr(vNC,2)}")
        k.e(f"v_cvt_pk_bf16_f32 {vr(XR+q)}, {vr(u)}, {vr(u+1)}")
        if q % 4 == 3:
            j = q // 4
            k.e("s_nop 0")
            k.lg(f"ds_write_b128 {vr(vLwr+j%4)}, {vr(XR+4*j,4)} offset:{(j//4)*256}", "lnw")
    k.wait_lg_all()
    k.e("s_barrier")
    k.c("main loop")
    for i in range(4):
        k.lg(f"ds_read_b128 {vr(AF+4*i,4)}, {vr(vLrd+0)} offset:{i*16384}", ("A", 0))
    for s in range(KS):
        cur = AF + 16 * (s % 2)
        nxt = AF + 16 * ((s + 1) % 2)
        if s + 1 < KS:
            for i in range(4):
                k.lg(f"ds_read_b128 {vr(nxt+4*i,4)}, {vr(vLrd+(s+1)%4)} offset:{i*16384+((s+1)//4)*256}", ("A", s + 1))
        k.wait_lg(("A", s))
        k.wait_vm(("B", s))
        bb = BF + (s % PB) * nB * 4
        for j in range(nB):
            for i in range(4):
                acc = (j * 4 + i) * 4
                cc = "0" if s == 0 else ar(acc, 4)
                if A1:
                    k.e(f"v_mfma_f32_16x16x32_bf16 {ar(acc,4)}, {vr(cur+4*i,4)}, {vr(bb+4*j,4)}, {cc}")
                else:
                    k.e(f"v_mfma_f32_16x16x32_bf16 {ar(acc,4)}, {vr(bb+4*j,4)}, {vr(cur+4*i,4)}, {cc}")
        if s + PB < KS:
            for j in range(nB):
                k.vm(f"buffer_load_dwordx4 {vr(bb+4*j,4)}, {vr(vBoff+j)}, s[48:51], s61 offen offset:{(s+PB)*64}", ("B", s + PB))
    k.c("epilogue")
    k.e("v_and_b32 v2, 15, v1")
    k.e("v_lshrrev_b32 v3, 4, v1")
    if A1:
        k.e("v_lshlrev_b32 v4, 12, v2")
        k.e("v_lshl_add_u32 v4, v3, 3, v4")
        k.e("s_lshl_b32 s6, s5, 7")
        k.e("s_lshl_b32 s7, s3, 5")
        k.e("s_add_u32 s6, s6, s7")
        k.e("s_lshl_b32 s6, s6, 12")
        k.e("s_lshl_b32 s7, s4, 7")
        k.e("s_add_u32 s64, s6, s7")
        k.e("s_add_u32 s65, s64, 0x10000")
        k.e("s_nop 7")
        k.e("s_nop 7")
        for j in range(nB):
            for i in range(4):
                acc = (j * 4 + i) * 4
                t = EP + 8 * ((j * 4 + i) % 2)
                for r in range(4):
                    k.e(f"v_accvgpr_read_b32 {vr(t+r)}, {ar(acc+r)}")
                k.e(f"v_cvt_pk_bf16_f32 {vr(t+4)}, {vr(t)}, {vr(t+1)}")
                k.e(f"v_cvt_pk_bf16_f32 {vr(t+5)}, {vr(t+2)}, {vr(t+3)}")
                k.vm(f"buffer_store_dwordx2 {vr(t+4,2)}, v4, s[52:55], s{64+j} offen offset:{i*32}", "st")
    else:
        k.e("v_lshlrev_b32 v5, 3, v3")
        vBi = EP + 16
        for j in range(4):
            k.vm(f"buffer_load_dwordx2 {vr(vBi+2*j,2)}, v5, s[56:59], s63 offen offset:{32*j}", "bias")
        k.e("v_mul_u32_u24 v4, 0xe00, v2")
        k.e("v_lshl_add_u32 v4, v3, 3, v4")
        k.e("s_mul_i32 s6, s4, 0x38000")
        k.e("s_add_u32 s64, s6, s63")
        for i in range(1, 4):
            k.e(f"s_add_u32 s{64+i}, s64, 0x{i*16*3584:x}")
        k.wait_vm("bias")
        vBf = EP + 24
        for j in range(4):
            unpack_pair(k, vBf + 4 * j, vBf + 4 * j + 1, vBi + 2 * j)
            unpack_pair(k, vBf + 4 * j + 2, vBf + 4 * j + 3, vBi + 2 * j + 1)
        k.e("s_nop 7")
        for j in range(nB):
            for i in range(4):
                acc = (j * 4 + i) * 4
                t = EP + 8 * ((j * 4 + i) % 2)
                for r in range(4):
                    k.e(f"v_accvgpr_read_b32 {vr(t+r)}, {ar(acc+r)}")
                k.e(f"v_cvt_pk_bf16_f32 {vr(t+4)}, {vr(t)}, {vr(t+1)}")
                k.e(f"v_cvt_pk_bf16_f32 {vr(t+5)}, {vr(t+2)}, {vr(t+3)}")
                unpack_pair(k, t, t + 1, t + 4)
                unpack_pair(k, t + 2, t + 3, t + 5)
                for r in range(4):
                    k.e(f"v_add_f32 {vr(t+r)}, {vr(t+r)}, {vr(vBf+4*j+r)}")
                k.e(f"v_cvt_pk_bf16_f32 {vr(t+4)}, {vr(t)}, {vr(t+1)}")
                k.e(f"v_cvt_pk_bf16_f32 {vr(t+5)}, {vr(t+2)}, {vr(t+3)}")
                unpack_pair(k, t, t + 1, t + 4)
                unpack_pair(k, t + 2, t + 3, t + 5)
                for r in range(4):
                    k.e(f"v_max_f32 {vr(t+r)}, 0, {vr(t+r)}")
                for r in range(4):
                    k.e(f"v_mul_f32 {vr(t+r)}, {vr(t+r)}, {vr(t+r)}")
                k.e(f"v_cvt_pk_bf16_f32 {vr(t+4)}, {vr(t)}, {vr(t+1)}")
                k.e(f"v_cvt_pk_bf16_f32 {vr(t+5)}, {vr(t+2)}, {vr(t+3)}")
                k.vm(f"buffer_store_dwordx2 {vr(t+4,2)}, v4, s[52:55], s{64+i} offen offset:{j*32}", "st")
    k.e(f"s_branch {end}")
    if transposer:
        k.label(tlab)
        k.c("transposer: w1 -> w1T, w2 -> w2T")
        k.e(f"s_sub_u32 s3, s2, {NWG}")
        k.e("s_cmp_ge_u32 s3, 448")
        k.e(f"s_cbranch_scc1 {end}")
        k.e("s_waitcnt lgkmcnt(0)")
        k.srd(44, P_W1, 0, D * F * 2)
        k.srd(48, P_WS, WS_W1T, D * F * 2)
        k.srd(52, P_W2, 0, D * F * 2)
        k.srd(56, P_WS, WS_W2T, D * F * 2)
        k.e("s_lshr_b32 s4, s3, 6")
        k.e("s_and_b32 s5, s3, 63")
        k.e("s_lshl_b32 s6, s4, 8")
        k.e("v_add_u32 v1, s6, v0")
        k.e("v_lshlrev_b32 v2, 1, v1")
        k.e("s_mul_i32 s7, s5, 0x7000")
        for e_ in range(8):
            k.e(f"s_add_u32 s9, s7, 0x{e_*3584:x}")
            k.vm(f"buffer_load_ushort {vr(8+e_)}, v2, s[44:47], s9 offen", "t1")
        k.e("v_lshlrev_b32 v3, 10, v1")
        k.e("s_lshl_b32 s10, s5, 4")
        k.e("s_lshr_b32 s11, s3, 1")
        k.e("s_and_b32 s12, s3, 1")
        k.e("s_lshl_b32 s12, s12, 8")
        k.e("v_add_u32 v4, s12, v0")
        k.e("v_lshlrev_b32 v5, 1, v4")
        k.e("s_lshl_b32 s13, s11, 13")
        for e_ in range(8):
            k.e(f"s_add_u32 s9, s13, 0x{e_*1024:x}")
            k.vm(f"buffer_load_ushort {vr(16+e_)}, v5, s[52:55], s9 offen", "t2")
        k.e("v_mul_u32_u24 v6, 0xe00, v4")
        k.e("s_lshl_b32 s14, s11, 4")
        k.wait_vm("t1")
        for p in range(4):
            k.e(f"v_lshl_or_b32 {vr(24+p)}, {vr(8+2*p+1)}, 16, {vr(8+2*p)}")
        k.vm("buffer_store_dwordx4 v[24:27], v3, s[48:51], s10 offen", "st")
        k.wait_vm("t2")
        for p in range(4):
            k.e(f"v_lshl_or_b32 {vr(28+p)}, {vr(16+2*p+1)}, 16, {vr(16+2*p)}")
        k.vm("buffer_store_dwordx4 v[28:31], v6, s[56:59], s14 offen", "st")
    k.label(end)
    k.e("s_endpgm")
    return k.text() + "\n" + descriptor(name, NV, 64)


def gen_y(name, kind, x_ptr, x_off, o_ptr, o_off, P=5):
    k = K(name)
    A2 = kind == "A2"
    pitch = 4096 if A2 else 3584
    KS = 32 if A2 else 14
    NWG = 256
    vAoff = 2
    vBoff = 6
    vXo = 16
    vXold = 24
    vBias = 32
    vLane = 1
    FB = 40
    NV = FB + P * 32
    assert NV <= 256
    EPV = FB

    k.label(name)
    end = k.newlab("end")
    k.load_kernargs()
    k.e(f"s_cmp_ge_u32 s2, {NWG}")
    k.e(f"s_cbranch_scc1 {end}")
    k.e("v_lshrrev_b32 v2, 6, v0")
    k.e("v_and_b32 v1, 63, v0")
    k.e("v_readfirstlane_b32 s3, v2")
    k.e("s_and_b32 s6, s2, 7")
    k.e("s_lshr_b32 s7, s2, 3")
    k.e("s_lshr_b32 s4, s7, 3")
    k.e("s_lshl_b32 s6, s6, 2")
    k.e("s_add_u32 s4, s4, s6")
    k.e("s_and_b32 s5, s7, 7")
    k.e("s_waitcnt lgkmcnt(0)")
    if A2:
        k.e("s_cmp_lt_u32 s3, 2")
        k.e(f"s_cselect_b32 s44, s{P_SRE}, s{P_SIM}")
        k.e(f"s_cselect_b32 s45, s{P_SRE+1}, s{P_SIM+1}")
        k.e(f"s_mov_b32 s46, 0x{S*S*2:x}")
        k.e("s_mov_b32 s47, 0x00020000")
        k.srd(48, P_WS, WS_ABT, 1024 * S * 2)
        k.e("s_and_b32 s6, s3, 1")
        k.e("s_lshl_b32 s6, s6, 11")
        k.e("s_lshl_b32 s7, s4, 18")
        k.e("s_add_u32 s60, s6, s7")
        k.e("s_lshr_b32 s8, s3, 1")
        k.e("s_lshl_b32 s8, s8, 21")
        k.e("s_lshl_b32 s9, s5, 18")
        k.e("s_add_u32 s8, s8, s9")
        k.e("s_add_u32 s61, s8, s6")
    else:
        k.srd(44, P_WS, WS_H, S * F * 2)
        k.srd(48, P_WS, WS_W2T, D * F * 2)
        k.srd(56, P_B2, 0, D * 2)
        k.e("s_mul_i32 s6, s3, 896")
        k.e("s_mul_i32 s7, s4, 0x38000")
        k.e("s_add_u32 s60, s6, s7")
        k.e("s_mul_i32 s7, s5, 0x38000")
        k.e("s_add_u32 s61, s6, s7")
    k.srd(64, x_ptr, x_off, S * D * 2)
    k.srd(68, o_ptr, o_off, S * D * 2)
    k.e("v_and_b32 v10, 15, v1")
    k.e("v_lshrrev_b32 v11, 4, v1")
    if A2:
        k.e("v_lshlrev_b32 v12, 12, v10")
    else:
        k.e("v_mul_u32_u24 v12, 0xe00, v10")
    k.e("v_lshl_add_u32 v12, v11, 4, v12")
    for i in range(4):
        if i == 0:
            k.e(f"v_mov_b32 {vr(vAoff)}, v12")
            k.e(f"v_mov_b32 {vr(vBoff)}, v12")
        else:
            k.e(f"v_add_u32 {vr(vAoff+i)}, 0x{i*16*pitch:x}, v12")
            k.e(f"v_add_u32 {vr(vBoff+i)}, 0x{i*16*pitch:x}, v12")

    def issue(s):
        b = FB + (s % P) * 32
        for i in range(4):
            k.vm(f"buffer_load_dwordx4 {vr(b+4*i,4)}, {vr(vAoff+i)}, s[44:47], s60 offen offset:{s*64}", ("AB", s))
        for j in range(4):
            k.vm(f"buffer_load_dwordx4 {vr(b+16+4*j,4)}, {vr(vBoff+j)}, s[48:51], s61 offen offset:{s*64}", ("AB", s))

    for s in range(min(P, KS)):
        issue(s)
    k.e("v_lshlrev_b32 v13, 10, v10")
    k.e("v_lshl_add_u32 v13, v11, 3, v13")
    k.e(f"v_mov_b32 {vr(vXo)}, v13")
    k.e("s_lshl_b32 s6, s4, 16")
    k.e("s_lshl_b32 s7, s3, 14")
    k.e("s_add_u32 s6, s6, s7")
    k.e("s_lshl_b32 s7, s5, 7")
    k.e("s_add_u32 s62, s6, s7")
    for j in range(4):
        k.vm(f"buffer_load_dwordx2 {vr(vXold+2*j,2)}, {vr(vXo)}, s[64:67], s62 offen offset:{32*j}", "xold")
    if not A2:
        k.e("v_lshlrev_b32 v14, 3, v11")
        k.e("s_lshl_b32 s63, s5, 7")
        for j in range(4):
            k.vm(f"buffer_load_dwordx2 {vr(vBias+2*j,2)}, v14, s[56:59], s63 offen offset:{32*j}", "bias")
    for s in range(KS):
        k.wait_vm(("AB", s))
        b = FB + (s % P) * 32
        for j in range(4):
            for i in range(4):
                acc = (j * 4 + i) * 4
                cc = "0" if s == 0 else ar(acc, 4)
                k.e(f"v_mfma_f32_16x16x32_bf16 {ar(acc,4)}, {vr(b+16+4*j,4)}, {vr(b+4*i,4)}, {cc}")
        if s + P < KS:
            issue(s + P)
    k.c("reduction")
    k.e("v_lshlrev_b32 v13, 4, v1")
    k.e("s_lshl_b32 s6, s3, 12")
    k.e("v_add_u32 v14, s6, v13")
    k.e("s_lshl_b32 s7, s3, 14")
    k.e("v_add_u32 v15, s7, v13")
    k.e("s_nop 7")
    k.e("s_nop 3")
    for i in range(4):
        for j in range(4):
            acc = (j * 4 + i) * 4
            k.lg(f"ds_write_b128 v14, {ar(acc,4)} offset:{i*16384+j*1024}", "rw")
    k.wait_lg_all()
    k.e("s_barrier")
    R = EPV
    for w_ in range(4):
        for j in range(4):
            k.lg(f"ds_read_b128 {vr(R+(w_*4+j)*4,4)}, v15 offset:{w_*4096+j*1024}", ("rr", w_, j))
    k.wait_vm("bias")
    k.wait_vm("xold")
    T = EPV + 64
    for j in range(4):
        k.wait_lg(("rr", 3, j))
        p = [R + (w_ * 4 + j) * 4 for w_ in range(4)]
        if A2:
            for r in range(4):
                k.e(f"v_add_f32 {vr(p[0]+r)}, {vr(p[0]+r)}, {vr(p[1]+r)}")
                k.e(f"v_add_f32 {vr(p[2]+r)}, {vr(p[2]+r)}, {vr(p[3]+r)}")
            k.e(f"v_cvt_pk_bf16_f32 {vr(T)}, {vr(p[0])}, {vr(p[0]+1)}")
            k.e(f"v_cvt_pk_bf16_f32 {vr(T+1)}, {vr(p[0]+2)}, {vr(p[0]+3)}")
            k.e(f"v_cvt_pk_bf16_f32 {vr(T+2)}, {vr(p[2])}, {vr(p[2]+1)}")
            k.e(f"v_cvt_pk_bf16_f32 {vr(T+3)}, {vr(p[2]+2)}, {vr(p[2]+3)}")
            unpack_pair(k, p[0], p[0] + 1, T)
            unpack_pair(k, p[0] + 2, p[0] + 3, T + 1)
            unpack_pair(k, p[2], p[2] + 1, T + 2)
            unpack_pair(k, p[2] + 2, p[2] + 3, T + 3)
            for r in range(4):
                k.e(f"v_sub_f32 {vr(p[0]+r)}, {vr(p[0]+r)}, {vr(p[2]+r)}")
            k.e(f"v_cvt_pk_bf16_f32 {vr(T)}, {vr(p[0])}, {vr(p[0]+1)}")
            k.e(f"v_cvt_pk_bf16_f32 {vr(T+1)}, {vr(p[0]+2)}, {vr(p[0]+3)}")
        else:
            for r in range(4):
                k.e(f"v_add_f32 {vr(p[0]+r)}, {vr(p[0]+r)}, {vr(p[1]+r)}")
                k.e(f"v_add_f32 {vr(p[2]+r)}, {vr(p[2]+r)}, {vr(p[3]+r)}")
            for r in range(4):
                k.e(f"v_add_f32 {vr(p[0]+r)}, {vr(p[0]+r)}, {vr(p[2]+r)}")
            k.e(f"v_cvt_pk_bf16_f32 {vr(T)}, {vr(p[0])}, {vr(p[0]+1)}")
            k.e(f"v_cvt_pk_bf16_f32 {vr(T+1)}, {vr(p[0]+2)}, {vr(p[0]+3)}")
            unpack_pair(k, p[0], p[0] + 1, T)
            unpack_pair(k, p[0] + 2, p[0] + 3, T + 1)
            unpack_pair(k, p[2], p[2] + 1, vBias + 2 * j)
            unpack_pair(k, p[2] + 2, p[2] + 3, vBias + 2 * j + 1)
            for r in range(4):
                k.e(f"v_add_f32 {vr(p[0]+r)}, {vr(p[0]+r)}, {vr(p[2]+r)}")
            k.e(f"v_cvt_pk_bf16_f32 {vr(T)}, {vr(p[0])}, {vr(p[0]+1)}")
            k.e(f"v_cvt_pk_bf16_f32 {vr(T+1)}, {vr(p[0]+2)}, {vr(p[0]+3)}")
        unpack_pair(k, p[0], p[0] + 1, T)
        unpack_pair(k, p[0] + 2, p[0] + 3, T + 1)
        unpack_pair(k, p[2], p[2] + 1, vXold + 2 * j)
        unpack_pair(k, p[2] + 2, p[2] + 3, vXold + 2 * j + 1)
        for r in range(4):
            k.e(f"v_add_f32 {vr(p[0]+r)}, {vr(p[0]+r)}, {vr(p[2]+r)}")
        tt = T + 4 + 2 * (j % 2)
        k.e(f"v_cvt_pk_bf16_f32 {vr(tt)}, {vr(p[0])}, {vr(p[0]+1)}")
        k.e(f"v_cvt_pk_bf16_f32 {vr(tt+1)}, {vr(p[0]+2)}, {vr(p[0]+3)}")
        k.vm(f"buffer_store_dwordx2 {vr(tt,2)}, {vr(vXo)}, s[68:71], s62 offen offset:{32*j}", "st")
    k.label(end)
    k.e("s_endpgm")
    return k.text() + "\n" + descriptor(name, NV, 64)


def main():
    kernels = []
    launches = []

    def add(text, name, grid, lds):
        kernels.append(".globl %s\n.p2align 8\n.type %s,@function\n" % (name, name) + text)
        launches.append(f"; @launch kernel={name} grid=({grid},1,1) block=(256,1,1) lds={lds}")

    LX = 65536
    LY = 65536
    add(gen_x("k1a1_kernel", "A1", P_AX, 0, True), "k1a1_kernel", 256 + 448, LX)
    add(gen_y("k2a2_kernel", "A2", P_AX, 0, P_WS, WS_X1), "k2a2_kernel", 256, LY)
    add(gen_x("k3b1_kernel", "B1", P_WS, WS_X1, False), "k3b1_kernel", 224, LX)
    add(gen_y("k4b2_kernel", "B2", P_WS, WS_X1, P_WS, WS_X2), "k4b2_kernel", 256, LY)
    add(gen_x("k5a1_kernel", "A1", P_WS, WS_X2, False), "k5a1_kernel", 256, LX)
    add(gen_y("k6a2_kernel", "A2", P_WS, WS_X2, P_WS, WS_X3), "k6a2_kernel", 256, LY)
    add(gen_x("k7b1_kernel", "B1", P_WS, WS_X3, False), "k7b1_kernel", 224, LX)
    add(gen_y("k8b2_kernel", "B2", P_WS, WS_X3, P_OUT, 0), "k8b2_kernel", 256, LY)

    ref = open(f"cdna_kernels/{NAME}.s.ref").read().splitlines()
    head = []
    for line in ref:
        if line.startswith("; @launch"):
            break
        head.append(line)
    out = "\n".join(head) + "\n" + "\n".join(launches) + "\n"
    out += '.amdgcn_target "amdgcn-amd-amdhsa--gfx950"\n.text\n'
    out += "\n".join(kernels)
    dst = sys.argv[1] if len(sys.argv) > 1 else f"cdna_kernels/{NAME}.s"
    open(dst, "w").write(out)
    print("wrote", dst, len(out), "bytes")


if __name__ == "__main__":
    main()
```

```python
import sys

NAME = "interleave_layers__spectral_fnet__dense_activation_squared_relu__prompt"

S, D, F = 2048, 512, 1792

WS_ABT = 0x0000000
WS_H = 0x0400000
WS_X1 = 0x0B00000
WS_X2 = 0x0D00000
WS_X3 = 0x0F00000
WS_W1T = 0x1100000
WS_W2T = 0x1300000
WS_DIAG = 0x2000000
import os
STAMP = bool(os.environ.get("STAMP"))

P_AX, P_SRE, P_SIM, P_HRE, P_HIM, P_BX, P_W1, P_B1, P_W2, P_B2, P_OUT, P_DBG, P_WS = [16 + 2 * i for i in range(13)]


class K:
    def __init__(self, name):
        self.name = name
        self.L = []
        self.vmq = []
        self.lgq = []
        self.nlab = 0

    def e(self, s):
        self.L.append("    " + s)

    def c(self, s):
        self.L.append("    ; " + s)

    def label(self, l):
        self.L.append(l + ":")

    def newlab(self, p="L"):
        self.nlab += 1
        return f".{p}_{self.name}_{self.nlab}"

    def vm(self, s, tag):
        self.e(s)
        self.vmq.append(tag)

    def wait_vm(self, tag):
        idx = None
        for i, t in enumerate(self.vmq):
            if t == tag:
                idx = i
        if idx is None:
            return
        n = len(self.vmq) - 1 - idx
        assert n <= 63, n
        self.e(f"s_waitcnt vmcnt({n})")
        self.vmq = self.vmq[idx + 1:]

    def wait_vm_all(self):
        if self.vmq:
            self.e("s_waitcnt vmcnt(0)")
        self.vmq = []

    def lg(self, s, tag):
        self.e(s)
        self.lgq.append(tag)

    def wait_lg(self, tag):
        idx = None
        for i, t in enumerate(self.lgq):
            if t == tag:
                idx = i
        if idx is None:
            return
        n = len(self.lgq) - 1 - idx
        assert n <= 15, n
        self.e(f"s_waitcnt lgkmcnt({n})")
        self.lgq = self.lgq[idx + 1:]

    def wait_lg_all(self):
        if self.lgq:
            self.e("s_waitcnt lgkmcnt(0)")
        self.lgq = []

    def srd(self, d, ptr, off, nbytes):
        if off:
            self.e(f"s_add_u32 s{d}, s{ptr}, 0x{off:x}")
            self.e(f"s_addc_u32 s{d+1}, s{ptr+1}, 0")
        else:
            self.e(f"s_mov_b32 s{d}, s{ptr}")
            self.e(f"s_mov_b32 s{d+1}, s{ptr+1}")
        self.e(f"s_mov_b32 s{d+2}, 0x{nbytes:x}")
        self.e(f"s_mov_b32 s{d+3}, 0x00020000")

    def load_kernargs(self):
        self.e("s_load_dwordx16 s[16:31], s[0:1], 0")
        self.e("s_load_dwordx8 s[32:39], s[0:1], 64")
        self.e("s_load_dwordx2 s[40:41], s[0:1], 96")

    def stamp(self, i):
        if not STAMP:
            return
        self.e(f"s_memtime s[{80+2*i}:{81+2*i}]")
        self.e("s_waitcnt lgkmcnt(0)")

    def stamp_flush(self, n, slot):
        if not STAMP:
            return
        self.e("s_waitcnt vmcnt(0) lgkmcnt(0)")
        self.e(f"s_memtime s[{80+2*n}:{81+2*n}]")
        self.e("s_waitcnt lgkmcnt(0)")
        self.srd(76, P_WS, WS_DIAG + slot * 0x10000, 0x10000)
        self.e("s_mov_b64 exec, 1")
        for q in range(16):
            self.e(f"v_mov_b32 v{8+q}, s{80+q}")
        self.e("s_lshl_b32 s75, s2, 6")
        self.e("v_mov_b32 v2, 0")
        for q in range(4):
            self.e(f"buffer_store_dwordx4 v[{8+4*q}:{11+4*q}], v2, s[76:79], s75 offen offset:{16*q}")
        self.e("s_waitcnt vmcnt(0)")

    def text(self):
        return "\n".join(self.L)


def vr(a, n=1):
    return f"v{a}" if n == 1 else f"v[{a}:{a+n-1}]"


def ar(a, n=1):
    return f"a{a}" if n == 1 else f"a[{a}:{a+n-1}]"


def descriptor(name, nvgpr, nagpr, nsgpr=100):
    acc = (nvgpr + 3) // 4 * 4
    nfv = acc + nagpr if nagpr else nvgpr
    return f""".section .rodata,"a"
.p2align 6
.amdhsa_kernel {name}
  .amdhsa_next_free_vgpr {nfv}
  .amdhsa_next_free_sgpr {nsgpr}
  .amdhsa_accum_offset {acc}
  .amdhsa_group_segment_fixed_size 0
  .amdhsa_kernarg_size 104
  .amdhsa_user_sgpr_count 2
  .amdhsa_user_sgpr_kernarg_segment_ptr 1
  .amdhsa_system_sgpr_workgroup_id_x 1
  .amdhsa_float_denorm_mode_32 3
.end_amdhsa_kernel
.text
"""


def bf16_round_pair(k, dst, a, b):
    k.e(f"v_cvt_pk_bf16_f32 {vr(dst)}, {vr(a)}, {vr(b)}")


def unpack_pair(k, lo, hi, src):
    k.e(f"v_lshlrev_b32 {vr(lo)}, 16, {vr(src)}")
    k.e(f"v_and_b32 {vr(hi)}, 0xffff0000, {vr(src)}")


def gen_x(name, kind, x_ptr, x_off, transposer, slot=0):
    k = K(name)
    A1 = kind == "A1"
    WN = 32 if A1 else 64
    nB = WN // 16
    NT = 8 if A1 else 7
    NWG = 32 * NT
    PB = 8 if A1 else 4
    KS = 16

    vLane, vT0, vT1, vT2, vT3 = 1, 2, 3, 4, 5
    vBoff = 10
    vLrd = 14
    vLwr = 18
    vXoff = 22
    vTmp = 24
    BF = 40
    XR = 104
    AF = 104
    EP = 168
    NV = 216

    k.label(name)
    end = k.newlab("end")
    k.load_kernargs()
    if transposer:
        tlab = k.newlab("tr")
        k.e(f"s_cmp_ge_u32 s2, {NWG}")
        k.e(f"s_cbranch_scc1 {tlab}")
    else:
        k.e(f"s_cmp_ge_u32 s2, {NWG}")
        k.e(f"s_cbranch_scc1 {end}")
    k.stamp(0)
    k.e("v_lshrrev_b32 v2, 6, v0")
    k.e("v_and_b32 v1, 63, v0")
    k.e("v_readfirstlane_b32 s3, v2")
    if A1:
        k.e("s_and_b32 s5, s2, 7")
        k.e("s_lshr_b32 s4, s2, 3")
    else:
        k.e("s_mul_i32 s4, s2, 0x4925")
        k.e("s_lshr_b32 s4, s4, 17")
        k.e("s_mul_i32 s6, s4, 7")
        k.e("s_sub_u32 s5, s2, s6")
    k.e("s_waitcnt lgkmcnt(0)")
    k.srd(44, x_ptr, x_off, S * D * 2)
    if A1:
        k.e("s_cmp_lt_u32 s5, 4")
        k.e(f"s_cselect_b32 s48, s{P_HRE}, s{P_HIM}")
        k.e(f"s_cselect_b32 s49, s{P_HRE+1}, s{P_HIM+1}")
        k.e(f"s_mov_b32 s50, 0x{D*D*2:x}")
        k.e("s_mov_b32 s51, 0x00020000")
        k.srd(52, P_WS, WS_ABT, 1024 * S * 2)
        k.e("s_and_b32 s6, s5, 3")
        k.e("s_lshl_b32 s6, s6, 7")
        k.e("s_lshl_b32 s7, s3, 5")
        k.e("s_add_u32 s6, s6, s7")
        k.e("s_lshl_b32 s61, s6, 10")
    else:
        k.srd(48, P_WS, WS_W1T, F * D * 2)
        k.srd(52, P_WS, WS_H, S * F * 2)
        k.srd(56, P_B1, 0, F * 2)
        k.e("s_lshl_b32 s6, s5, 8")
        k.e("s_lshl_b32 s7, s3, 6")
        k.e("s_add_u32 s6, s6, s7")
        k.e("s_lshl_b32 s61, s6, 10")
        k.e("s_lshl_b32 s63, s6, 1")
    k.e("s_lshl_b32 s60, s4, 16")
    k.e("v_and_b32 v2, 15, v1")
    k.e("v_lshrrev_b32 v3, 4, v1")
    if A1:
        k.e("v_lshlrev_b32 v4, 10, v2")
        k.e("v_lshl_add_u32 v4, v3, 4, v4")
    else:
        k.e("v_lshlrev_b32 v4, 4, v1")
    for j in range(nB):
        if j == 0:
            k.e(f"v_mov_b32 {vr(vBoff)}, v4")
        else:
            k.e(f"v_add_u32 {vr(vBoff+j)}, 0x{j*16*1024:x}, v4")
    for s in range(PB):
        for j in range(nB):
            d = BF + ((s % PB) * nB + j) * 4
            if A1:
                k.vm(f"buffer_load_dwordx4 {vr(d,4)}, {vr(vBoff+j)}, s[48:51], s61 offen offset:{s*64}", ("B", s))
            else:
                k.vm(f"buffer_load_dwordx4 {vr(d,4)}, {vr(vBoff+j)}, s[48:51], s61 offen", ("B", s))
        if not A1:
            k.e("s_add_u32 s61, s61, 0x400")
    k.e("v_lshrrev_b32 v2, 2, v1")
    k.e("v_and_b32 v3, 3, v1")
    k.e("v_lshlrev_b32 v4, 10, v2")
    k.e("v_lshl_add_u32 v4, v3, 4, v4")
    k.e("s_lshl_b32 s6, s3, 14")
    k.e(f"v_add_u32 {vr(vXoff)}, s6, v4")
    for j in range(16):
        k.vm(f"buffer_load_dwordx4 {vr(XR+4*j,4)}, {vr(vXoff)}, s[44:47], s60 offen offset:{j*64}", ("X", j))
    k.e(f"v_lshlrev_b32 v5, 4, v3")
    k.e(f"v_sub_u32 v6, {vr(vXoff)}, v5")
    for jj in range(4):
        k.e(f"v_add_u32 v5, {4*jj}, v3")
        k.e("v_xor_b32 v5, v5, v2")
        k.e(f"v_lshl_add_u32 {vr(vLwr+jj)}, v5, 4, v6")
    k.e("v_and_b32 v2, 15, v1")
    k.e("v_lshrrev_b32 v3, 4, v1")
    for ss in range(4):
        k.e(f"v_add_u32 v5, {4*ss}, v3")
        k.e("v_xor_b32 v5, v5, v2")
        k.e("v_lshlrev_b32 v5, 4, v5")
        k.e(f"v_lshl_add_u32 {vr(vLrd+ss)}, v2, 10, v5")
    k.stamp(1)
    k.c("LayerNorm: pass 1 (mean)")
    T = vTmp
    k.e("s_mov_b32 s8, 0x3f803f80")
    for a in range(4):
        k.e(f"v_mov_b32 {vr(T+a)}, 0")
    for q in range(64):
        if q % 4 == 0:
            k.wait_vm(("X", q // 4))
        k.e(f"v_dot2c_f32_bf16 {vr(T+q%4)}, s8, {vr(XR+q)}")
    k.e("s_nop 2")
    k.e(f"v_add_f32 {vr(T)}, {vr(T)}, {vr(T+1)}")
    k.e(f"v_add_f32 {vr(T+2)}, {vr(T+2)}, {vr(T+3)}")
    k.e(f"v_add_f32 {vr(T)}, {vr(T)}, {vr(T+2)}")
    k.e("s_nop 1")
    k.e(f"v_add_f32_dpp {vr(T+1)}, {vr(T)}, {vr(T)} quad_perm:[1,0,3,2] row_mask:0xf bank_mask:0xf")
    k.e("s_nop 1")
    k.e(f"v_add_f32_dpp {vr(T)}, {vr(T+1)}, {vr(T+1)} quad_perm:[2,3,0,1] row_mask:0xf bank_mask:0xf")
    vMean = T + 4
    k.e(f"v_mul_f32 {vr(vMean)}, 0x3b000000, {vr(T)}")
    vNM = T + 6
    k.e(f"v_sub_f32 {vr(vNM)}, 0, {vr(vMean)}")
    k.e(f"v_sub_f32 {vr(vNM+1)}, 0, {vr(vMean)}")
    k.c("LayerNorm: pass 2 (variance)")
    vS = T + 8
    for a in range(4):
        k.e(f"v_mov_b32 {vr(vS+a)}, 0")
    U = T + 12
    for q in range(64):
        u = U + 2 * (q % 2)
        sacc = vS + 2 * (q % 2)
        unpack_pair(k, u, u + 1, XR + q)
        k.e(f"v_pk_add_f32 {vr(u,2)}, {vr(u,2)}, {vr(vNM,2)}")
        k.e(f"v_pk_fma_f32 {vr(sacc,2)}, {vr(u,2)}, {vr(u,2)}, {vr(sacc,2)}")
    k.e(f"v_add_f32 {vr(vS)}, {vr(vS)}, {vr(vS+1)}")
    k.e(f"v_add_f32 {vr(vS+2)}, {vr(vS+2)}, {vr(vS+3)}")
    k.e(f"v_add_f32 {vr(vS)}, {vr(vS)}, {vr(vS+2)}")
    k.e("s_nop 1")
    k.e(f"v_add_f32_dpp {vr(vS+1)}, {vr(vS)}, {vr(vS)} quad_perm:[1,0,3,2] row_mask:0xf bank_mask:0xf")
    k.e("s_nop 1")
    k.e(f"v_add_f32_dpp {vr(vS)}, {vr(vS+1)}, {vr(vS+1)} quad_perm:[2,3,0,1] row_mask:0xf bank_mask:0xf")
    k.e(f"v_mul_f32 {vr(vS)}, 0x3b000000, {vr(vS)}")
    w = vS + 1
    k.e(f"v_cvt_pk_bf16_f32 {vr(w)}, {vr(vS)}, {vr(vMean)}")
    k.e(f"v_lshlrev_b32 {vr(vS+2)}, 16, {vr(w)}")
    k.e(f"v_and_b32 {vr(vS+3)}, 0xffff0000, {vr(w)}")
    k.e(f"v_add_f32 {vr(vS+2)}, 0x3727c5ac, {vr(vS+2)}")
    k.e(f"v_cvt_pk_bf16_f32 {vr(w)}, {vr(vS+2)}, {vr(vS+2)}")
    k.e(f"v_lshlrev_b32 {vr(vS+2)}, 16, {vr(w)}")
    k.e(f"v_sqrt_f32 {vr(vS+2)}, {vr(vS+2)}")
    k.e("s_nop 0")
    k.e(f"v_cvt_pk_bf16_f32 {vr(w)}, {vr(vS+2)}, {vr(vS+2)}")
    k.e(f"v_lshlrev_b32 {vr(vS+2)}, 16, {vr(w)}")
    vR = T + 6
    k.e(f"v_rcp_f32 {vr(vR)}, {vr(vS+2)}")
    k.e("s_nop 0")
    k.e(f"v_mov_b32 {vr(vR+1)}, {vr(vR)}")
    vNC = T + 8
    k.e(f"v_mul_f32 {vr(vNC)}, {vr(vS+3)}, {vr(vR)}")
    k.e(f"v_sub_f32 {vr(vNC)}, 0, {vr(vNC)}")
    k.e(f"v_mov_b32 {vr(vNC+1)}, {vr(vNC)}")
    k.c("LayerNorm: pass 3 (normalise, to LDS)")
    for q in range(64):
        u = U + 2 * (q % 2)
        unpack_pair(k, u, u + 1, XR + q)
        k.e(f"v_pk_fma_f32 {vr(u,2)}, {vr(u,2)}, {vr(vR,2)}, {vr(vNC,2)}")
        k.e(f"v_cvt_pk_bf16_f32 {vr(XR+q)}, {vr(u)}, {vr(u+1)}")
        if q % 4 == 3:
            j = q // 4
            k.e("s_nop 0")
            k.lg(f"ds_write_b128 {vr(vLwr+j%4)}, {vr(XR+4*j,4)} offset:{(j//4)*256}", "lnw")
    k.wait_lg_all()
    k.e("s_barrier")
    k.stamp(2)
    k.c("main loop")
    for i in range(4):
        k.lg(f"ds_read_b128 {vr(AF+4*i,4)}, {vr(vLrd+0)} offset:{i*16384}", ("A", 0))
    for s in range(KS):
        cur = AF + 16 * (s % 2)
        nxt = AF + 16 * ((s + 1) % 2)
        if s + 1 < KS:
            for i in range(4):
                k.lg(f"ds_read_b128 {vr(nxt+4*i,4)}, {vr(vLrd+(s+1)%4)} offset:{i*16384+((s+1)//4)*256}", ("A", s + 1))
        k.wait_lg(("A", s))
        k.wait_vm(("B", s))
        bb = BF + (s % PB) * nB * 4
        for j in range(nB):
            for i in range(4):
                acc = (j * 4 + i) * 4
                cc = "0" if s == 0 else ar(acc, 4)
                if A1:
                    k.e(f"v_mfma_f32_16x16x32_bf16 {ar(acc,4)}, {vr(cur+4*i,4)}, {vr(bb+4*j,4)}, {cc}")
                else:
                    k.e(f"v_mfma_f32_16x16x32_bf16 {ar(acc,4)}, {vr(bb+4*j,4)}, {vr(cur+4*i,4)}, {cc}")
        if s + PB < KS:
            for j in range(nB):
                if A1:
                    k.vm(f"buffer_load_dwordx4 {vr(bb+4*j,4)}, {vr(vBoff+j)}, s[48:51], s61 offen offset:{(s+PB)*64}", ("B", s + PB))
                else:
                    k.vm(f"buffer_load_dwordx4 {vr(bb+4*j,4)}, {vr(vBoff+j)}, s[48:51], s61 offen", ("B", s + PB))
            if not A1:
                k.e("s_add_u32 s61, s61, 0x400")
    k.stamp(3)
    k.c("epilogue")
    k.e("v_and_b32 v2, 15, v1")
    k.e("v_lshrrev_b32 v3, 4, v1")
    if A1:
        k.e("v_lshlrev_b32 v4, 4, v2")
        k.e("v_lshrrev_b32 v5, 1, v3")
        k.e("v_lshl_add_u32 v4, v5, 8, v4")
        k.e("v_and_b32 v5, 1, v3")
        k.e("v_lshl_add_u32 v4, v5, 3, v4")
        k.e("s_lshl_b32 s6, s5, 3")
        k.e("s_lshl_b32 s7, s3, 1")
        k.e("s_add_u32 s6, s6, s7")
        k.e("s_lshl_b32 s6, s6, 16")
        k.e("s_lshl_b32 s7, s4, 11")
        k.e("s_add_u32 s64, s6, s7")
        k.e("s_add_u32 s65, s64, 0x10000")
        k.e("s_nop 7")
        k.e("s_nop 7")
        for j in range(nB):
            for i in range(4):
                acc = (j * 4 + i) * 4
                t = EP + 8 * ((j * 4 + i) % 2)
                for r in range(4):
                    k.e(f"v_accvgpr_read_b32 {vr(t+r)}, {ar(acc+r)}")
                k.e(f"v_cvt_pk_bf16_f32 {vr(t+4)}, {vr(t)}, {vr(t+1)}")
                k.e(f"v_cvt_pk_bf16_f32 {vr(t+5)}, {vr(t+2)}, {vr(t+3)}")
                k.vm(f"buffer_store_dwordx2 {vr(t+4,2)}, v4, s[52:55], s{64+j} offen offset:{(i>>1)*1024+(i&1)*512}", "st")
    else:
        k.e("v_lshlrev_b32 v5, 3, v3")
        vBi = EP + 16
        for j in range(4):
            k.vm(f"buffer_load_dwordx2 {vr(vBi+2*j,2)}, v5, s[56:59], s63 offen offset:{32*j}", "bias")
        k.e("v_lshlrev_b32 v4, 4, v2")
        k.e("v_lshrrev_b32 v6, 1, v3")
        k.e("v_lshl_add_u32 v4, v6, 8, v4")
        k.e("v_and_b32 v6, 1, v3")
        k.e("v_lshl_add_u32 v4, v6, 3, v4")
        k.e("s_mul_i32 s6, s4, 0x38000")
        k.e("s_lshl_b32 s7, s63, 4")
        k.e("s_add_u32 s64, s6, s7")
        for i in range(1, 4):
            k.e(f"s_add_u32 s{64+i}, s64, 0x{i*57344:x}")
        k.wait_vm("bias")
        vBf = EP + 24
        for j in range(4):
            unpack_pair(k, vBf + 4 * j, vBf + 4 * j + 1, vBi + 2 * j)
            unpack_pair(k, vBf + 4 * j + 2, vBf + 4 * j + 3, vBi + 2 * j + 1)
        k.e("s_nop 7")
        for j in range(nB):
            for i in range(4):
                acc = (j * 4 + i) * 4
                t = EP + 8 * ((j * 4 + i) % 2)
                for r in range(4):
                    k.e(f"v_accvgpr_read_b32 {vr(t+r)}, {ar(acc+r)}")
                k.e(f"v_cvt_pk_bf16_f32 {vr(t+4)}, {vr(t)}, {vr(t+1)}")
                k.e(f"v_cvt_pk_bf16_f32 {vr(t+5)}, {vr(t+2)}, {vr(t+3)}")
                unpack_pair(k, t, t + 1, t + 4)
                unpack_pair(k, t + 2, t + 3, t + 5)
                for r in range(4):
                    k.e(f"v_add_f32 {vr(t+r)}, {vr(t+r)}, {vr(vBf+4*j+r)}")
                k.e(f"v_cvt_pk_bf16_f32 {vr(t+4)}, {vr(t)}, {vr(t+1)}")
                k.e(f"v_cvt_pk_bf16_f32 {vr(t+5)}, {vr(t+2)}, {vr(t+3)}")
                unpack_pair(k, t, t + 1, t + 4)
                unpack_pair(k, t + 2, t + 3, t + 5)
                for r in range(4):
                    k.e(f"v_max_f32 {vr(t+r)}, 0, {vr(t+r)}")
                for r in range(4):
                    k.e(f"v_mul_f32 {vr(t+r)}, {vr(t+r)}, {vr(t+r)}")
                k.e(f"v_cvt_pk_bf16_f32 {vr(t+4)}, {vr(t)}, {vr(t+1)}")
                k.e(f"v_cvt_pk_bf16_f32 {vr(t+5)}, {vr(t+2)}, {vr(t+3)}")
                k.vm(f"buffer_store_dwordx2 {vr(t+4,2)}, v4, s[52:55], s{64+i} offen offset:{(j>>1)*1024+(j&1)*512}", "st")
    k.stamp_flush(4, slot)
    k.e(f"s_branch {end}")
    if transposer:
        k.label(tlab)
        k.c("transposer: w1 -> w1T, w2 -> w2T")
        k.e(f"s_sub_u32 s3, s2, {NWG}")
        k.e("s_cmp_ge_u32 s3, 448")
        k.e(f"s_cbranch_scc1 {end}")
        k.e("s_waitcnt lgkmcnt(0)")
        k.srd(44, P_W1, 0, D * F * 2)
        k.srd(48, P_WS, WS_W1T, D * F * 2)
        k.srd(52, P_W2, 0, D * F * 2)
        k.srd(56, P_WS, WS_W2T, D * F * 2)
        k.e("s_lshr_b32 s4, s3, 6")
        k.e("s_and_b32 s5, s3, 63")
        k.e("s_lshl_b32 s6, s4, 8")
        k.e("v_add_u32 v1, s6, v0")
        k.e("v_lshlrev_b32 v2, 1, v1")
        k.e("s_mul_i32 s7, s5, 0x7000")
        for e_ in range(8):
            k.e(f"s_add_u32 s9, s7, 0x{e_*3584:x}")
            k.vm(f"buffer_load_ushort {vr(8+e_)}, v2, s[44:47], s9 offen", "t1")
        k.e("v_lshrrev_b32 v3, 4, v1")
        k.e("v_lshlrev_b32 v3, 14, v3")
        k.e("v_and_b32 v7, 15, v1")
        k.e("v_lshl_add_u32 v3, v7, 4, v3")
        k.e("s_lshr_b32 s10, s5, 2")
        k.e("s_lshl_b32 s10, s10, 10")
        k.e("s_and_b32 s15, s5, 3")
        k.e("s_lshl_b32 s15, s15, 8")
        k.e("s_add_u32 s10, s10, s15")
        k.e("s_lshr_b32 s11, s3, 1")
        k.e("s_and_b32 s12, s3, 1")
        k.e("s_lshl_b32 s12, s12, 8")
        k.e("v_add_u32 v4, s12, v0")
        k.e("v_lshlrev_b32 v5, 1, v4")
        k.e("s_lshl_b32 s13, s11, 13")
        for e_ in range(8):
            k.e(f"s_add_u32 s9, s13, 0x{e_*1024:x}")
            k.vm(f"buffer_load_ushort {vr(16+e_)}, v5, s[52:55], s9 offen", "t2")
        k.e("v_lshrrev_b32 v6, 4, v4")
        k.e("v_mul_u32_u24 v6, 0xe000, v6")
        k.e("v_and_b32 v7, 15, v4")
        k.e("v_lshl_add_u32 v6, v7, 4, v6")
        k.e("s_lshr_b32 s14, s11, 2")
        k.e("s_lshl_b32 s14, s14, 10")
        k.e("s_and_b32 s15, s11, 3")
        k.e("s_lshl_b32 s15, s15, 8")
        k.e("s_add_u32 s14, s14, s15")
        k.wait_vm("t1")
        for p in range(4):
            k.e(f"v_lshl_or_b32 {vr(24+p)}, {vr(8+2*p+1)}, 16, {vr(8+2*p)}")
        k.vm("buffer_store_dwordx4 v[24:27], v3, s[48:51], s10 offen", "st")
        k.wait_vm("t2")
        for p in range(4):
            k.e(f"v_lshl_or_b32 {vr(28+p)}, {vr(16+2*p+1)}, 16, {vr(16+2*p)}")
        k.vm("buffer_store_dwordx4 v[28:31], v6, s[56:59], s14 offen", "st")
    k.label(end)
    k.e("s_endpgm")
    return k.text() + "\n" + descriptor(name, NV, 64)


def gen_y(name, kind, x_ptr, x_off, o_ptr, o_off, P=5, slot=0):
    k = K(name)
    A2 = kind == "A2"
    pitch = 4096 if A2 else 3584
    KS = 32 if A2 else 14
    NWG = 256
    vAoff = 2
    vBoff = 6
    vXo = 16
    vXold = 24
    vBias = 32
    vLane = 1
    FB = 40
    NV = FB + P * 32
    assert NV <= 256
    EPV = FB

    k.label(name)
    end = k.newlab("end")
    k.load_kernargs()
    k.e(f"s_cmp_ge_u32 s2, {NWG}")
    k.e(f"s_cbranch_scc1 {end}")
    k.stamp(0)
    k.e("v_lshrrev_b32 v2, 6, v0")
    k.e("v_and_b32 v1, 63, v0")
    k.e("v_readfirstlane_b32 s3, v2")
    k.e("s_and_b32 s6, s2, 7")
    k.e("s_lshr_b32 s7, s2, 3")
    k.e("s_lshr_b32 s4, s7, 3")
    k.e("s_lshl_b32 s6, s6, 2")
    k.e("s_add_u32 s4, s4, s6")
    k.e("s_and_b32 s5, s7, 7")
    k.e("s_waitcnt lgkmcnt(0)")
    k.stamp(7)
    if A2:
        k.e("s_cmp_lt_u32 s3, 2")
        k.e(f"s_cselect_b32 s44, s{P_SRE}, s{P_SIM}")
        k.e(f"s_cselect_b32 s45, s{P_SRE+1}, s{P_SIM+1}")
        k.e(f"s_mov_b32 s46, 0x{S*S*2:x}")
        k.e("s_mov_b32 s47, 0x00020000")
        k.srd(48, P_WS, WS_ABT, 1024 * S * 2)
        k.e("s_and_b32 s6, s3, 1")
        k.e("s_lshl_b32 s6, s6, 11")
        k.e("s_lshl_b32 s7, s4, 18")
        k.e("s_add_u32 s60, s6, s7")
        k.e("s_lshr_b32 s8, s3, 1")
        k.e("s_lshl_b32 s8, s8, 21")
        k.e("s_lshl_b32 s9, s5, 18")
        k.e("s_add_u32 s8, s8, s9")
        k.e("s_lshl_b32 s9, s6, 4")
        k.e("s_add_u32 s61, s8, s9")
    else:
        k.srd(44, P_WS, WS_H, S * F * 2)
        k.srd(48, P_WS, WS_W2T, D * F * 2)
        k.srd(56, P_B2, 0, D * 2)
        k.e("s_mul_i32 s6, s3, 0x3800")
        k.e("s_mul_i32 s7, s4, 0x38000")
        k.e("s_add_u32 s60, s6, s7")
        k.e("s_mul_i32 s7, s5, 0x38000")
        k.e("s_add_u32 s61, s6, s7")
    k.srd(64, x_ptr, x_off, S * D * 2)
    k.srd(68, o_ptr, o_off, S * D * 2)
    k.e("v_and_b32 v10, 15, v1")
    k.e("v_lshrrev_b32 v11, 4, v1")
    k.e("v_lshlrev_b32 v12, 12, v10")
    k.e("v_lshl_add_u32 v12, v11, 4, v12")
    k.e("v_lshlrev_b32 v17, 4, v1")
    for i in range(4):
        if A2:
            k.e(f"v_add_u32 {vr(vAoff+i)}, 0x{i*16*pitch:x}, v12")
        else:
            k.e(f"v_add_u32 {vr(vAoff+i)}, 0x{i*16*pitch:x}, v17")
        k.e(f"v_add_u32 {vr(vBoff+i)}, 0x{i*16*pitch:x}, v17")

    def issue(s):
        b = FB + (s % P) * 32
        for i in range(4):
            if A2:
                k.vm(f"buffer_load_dwordx4 {vr(b+4*i,4)}, {vr(vAoff+i)}, s[44:47], s60 offen offset:{s*64}", ("AB", s))
            else:
                k.vm(f"buffer_load_dwordx4 {vr(b+4*i,4)}, {vr(vAoff+i)}, s[44:47], s60 offen", ("AB", s))
        for j in range(4):
            k.vm(f"buffer_load_dwordx4 {vr(b+16+4*j,4)}, {vr(vBoff+j)}, s[48:51], s61 offen", ("AB", s))
        if not A2:
            k.e("s_add_u32 s60, s60, 0x400")
        k.e("s_add_u32 s61, s61, 0x400")

    NS = 3
    PB = 4
    vDma = FB + 96
    vRd = FB + 104
    AFR = FB
    BFR = FB + 32

    def dma(st):
        for u in range(8):
            k.e(f"s_add_u32 m0, s72, 0x{(st % NS) * 8192 + u * 1024:x}")
            k.e("s_nop 0")
            k.vm(f"buffer_load_dwordx4 {vr(vDma+u)}, s[44:47], s60 offen lds", ("D", st))
        k.e("s_add_u32 s60, s60, 0x80")

    def bload(t):
        b = BFR + (t % PB) * 16
        for j in range(4):
            k.vm(f"buffer_load_dwordx4 {vr(b+4*j,4)}, {vr(vBoff+j)}, s[48:51], s61 offen", ("B", t))
        k.e("s_add_u32 s61, s61, 0x400")

    def aread(t):
        a = AFR + (t % 2) * 16
        st = t >> 1
        for i in range(4):
            k.lg(f"ds_read_b128 {vr(a+4*i,4)}, {vr(vRd + (t & 1))} offset:{(st % NS) * 8192 + i * 2048}", ("A", t))

    if A2:
        k.e("v_lshrrev_b32 v13, 3, v1")
        k.e("v_and_b32 v14, 7, v1")
        k.e("v_lshrrev_b32 v15, 4, v1")
        k.e("v_xor_b32 v14, v14, v15")
        k.e("v_lshlrev_b32 v13, 12, v13")
        k.e("v_lshl_add_u32 v15, v14, 4, v13")
        k.e("v_xor_b32 v14, 4, v14")
        k.e("v_lshl_add_u32 v14, v14, 4, v13")
        for u in range(8):
            k.e(f"v_add_u32 {vr(vDma+u)}, 0x{u*32768:x}, {'v15' if u % 2 == 0 else 'v14'}")
        k.e("s_mul_i32 s72, s3, %d" % (NS * 8192))
        k.e("v_lshrrev_b32 v13, 1, v10")
        k.e("v_xor_b32 v13, v13, v11")
        k.e("v_lshlrev_b32 v13, 4, v13")
        k.e("v_and_b32 v14, 7, v10")
        k.e("v_lshl_add_u32 v13, v14, 7, v13")
        k.e("v_lshrrev_b32 v14, 3, v10")
        k.e("v_lshl_add_u32 v13, v14, 10, v13")
        k.e(f"v_add_u32 {vr(vRd)}, s72, v13")
        k.e(f"v_xor_b32 {vr(vRd+1)}, 64, {vr(vRd)}")
        for st in range(NS):
            dma(st)
        for t in range(PB):
            bload(t)
    else:
        for s in range(min(P, KS)):
            issue(s)
    k.e("v_lshlrev_b32 v13, 10, v10")
    k.e("v_lshl_add_u32 v13, v11, 3, v13")
    k.e(f"v_mov_b32 {vr(vXo)}, v13")
    k.e("s_lshl_b32 s6, s4, 16")
    k.e("s_lshl_b32 s7, s3, 14")
    k.e("s_add_u32 s6, s6, s7")
    k.e("s_lshl_b32 s7, s5, 7")
    k.e("s_add_u32 s62, s6, s7")
    for j in range(4):
        k.vm(f"buffer_load_dwordx2 {vr(vXold+2*j,2)}, {vr(vXo)}, s[64:67], s62 offen offset:{32*j}", "xold")
    if not A2:
        k.e("v_lshlrev_b32 v14, 3, v11")
        k.e("s_lshl_b32 s63, s5, 7")
        for j in range(4):
            k.vm(f"buffer_load_dwordx2 {vr(vBias+2*j,2)}, v14, s[56:59], s63 offen offset:{32*j}", "bias")
    if A2:
        k.wait_vm(("D", 0))
        k.stamp(1)
        aread(0)
        for t in range(KS):
            if t + 1 < KS:
                if (t + 1) % 2 == 0:
                    k.wait_vm(("D", (t + 1) // 2))
                aread(t + 1)
            k.wait_lg(("A", t))
            k.wait_vm(("B", t))
            if t == KS // 2:
                k.stamp(2)
            a = AFR + (t % 2) * 16
            b = BFR + (t % PB) * 16
            for j in range(4):
                for i in range(4):
                    acc = (j * 4 + i) * 4
                    cc = "0" if t == 0 else ar(acc, 4)
                    k.e(f"v_mfma_f32_16x16x32_bf16 {ar(acc,4)}, {vr(b+4*j,4)}, {vr(a+4*i,4)}, {cc}")
            if t % 2 == 1 and (t >> 1) + NS < KS // 2:
                dma((t >> 1) + NS)
            if t + PB < KS:
                bload(t + PB)
        k.e("s_barrier")
    for s in range(KS if not A2 else 0):
        k.wait_vm(("AB", s))
        if s == 0:
            k.stamp(1)
        if s == KS // 2:
            k.stamp(2)
        b = FB + (s % P) * 32
        for j in range(4):
            for i in range(4):
                acc = (j * 4 + i) * 4
                cc = "0" if s == 0 else ar(acc, 4)
                k.e(f"v_mfma_f32_16x16x32_bf16 {ar(acc,4)}, {vr(b+16+4*j,4)}, {vr(b+4*i,4)}, {cc}")
        if s + P < KS:
            issue(s + P)
    k.stamp(3)
    k.c("reduction")
    k.e("v_lshlrev_b32 v13, 4, v1")
    k.e("s_lshl_b32 s6, s3, 12")
    k.e("v_add_u32 v14, s6, v13")
    k.e("s_lshl_b32 s7, s3, 14")
    k.e("v_add_u32 v15, s7, v13")
    k.e("s_nop 7")
    k.e("s_nop 3")
    for i in range(4):
        for j in range(4):
            acc = (j * 4 + i) * 4
            k.lg(f"ds_write_b128 v14, {ar(acc,4)} offset:{i*16384+j*1024}", "rw")
    k.wait_lg_all()
    k.e("s_barrier")
    k.stamp(4)
    R = EPV
    for w_ in range(4):
        for j in range(4):
            k.lg(f"ds_read_b128 {vr(R+(w_*4+j)*4,4)}, v15 offset:{w_*4096+j*1024}", ("rr", w_, j))
    k.wait_vm("bias")
    k.wait_vm("xold")
    T = EPV + 64
    for j in range(4):
        k.wait_lg(("rr", 3, j))
        p = [R + (w_ * 4 + j) * 4 for w_ in range(4)]
        if A2:
            for r in range(4):
                k.e(f"v_add_f32 {vr(p[0]+r)}, {vr(p[0]+r)}, {vr(p[1]+r)}")
                k.e(f"v_add_f32 {vr(p[2]+r)}, {vr(p[2]+r)}, {vr(p[3]+r)}")
            k.e(f"v_cvt_pk_bf16_f32 {vr(T)}, {vr(p[0])}, {vr(p[0]+1)}")
            k.e(f"v_cvt_pk_bf16_f32 {vr(T+1)}, {vr(p[0]+2)}, {vr(p[0]+3)}")
            k.e(f"v_cvt_pk_bf16_f32 {vr(T+2)}, {vr(p[2])}, {vr(p[2]+1)}")
            k.e(f"v_cvt_pk_bf16_f32 {vr(T+3)}, {vr(p[2]+2)}, {vr(p[2]+3)}")
            unpack_pair(k, p[0], p[0] + 1, T)
            unpack_pair(k, p[0] + 2, p[0] + 3, T + 1)
            unpack_pair(k, p[2], p[2] + 1, T + 2)
            unpack_pair(k, p[2] + 2, p[2] + 3, T + 3)
            for r in range(4):
                k.e(f"v_sub_f32 {vr(p[0]+r)}, {vr(p[0]+r)}, {vr(p[2]+r)}")
            k.e(f"v_cvt_pk_bf16_f32 {vr(T)}, {vr(p[0])}, {vr(p[0]+1)}")
            k.e(f"v_cvt_pk_bf16_f32 {vr(T+1)}, {vr(p[0]+2)}, {vr(p[0]+3)}")
        else:
            for r in range(4):
                k.e(f"v_add_f32 {vr(p[0]+r)}, {vr(p[0]+r)}, {vr(p[1]+r)}")
                k.e(f"v_add_f32 {vr(p[2]+r)}, {vr(p[2]+r)}, {vr(p[3]+r)}")
            for r in range(4):
                k.e(f"v_add_f32 {vr(p[0]+r)}, {vr(p[0]+r)}, {vr(p[2]+r)}")
            k.e(f"v_cvt_pk_bf16_f32 {vr(T)}, {vr(p[0])}, {vr(p[0]+1)}")
            k.e(f"v_cvt_pk_bf16_f32 {vr(T+1)}, {vr(p[0]+2)}, {vr(p[0]+3)}")
            unpack_pair(k, p[0], p[0] + 1, T)
            unpack_pair(k, p[0] + 2, p[0] + 3, T + 1)
            unpack_pair(k, p[2], p[2] + 1, vBias + 2 * j)
            unpack_pair(k, p[2] + 2, p[2] + 3, vBias + 2 * j + 1)
            for r in range(4):
                k.e(f"v_add_f32 {vr(p[0]+r)}, {vr(p[0]+r)}, {vr(p[2]+r)}")
            k.e(f"v_cvt_pk_bf16_f32 {vr(T)}, {vr(p[0])}, {vr(p[0]+1)}")
            k.e(f"v_cvt_pk_bf16_f32 {vr(T+1)}, {vr(p[0]+2)}, {vr(p[0]+3)}")
        unpack_pair(k, p[0], p[0] + 1, T)
        unpack_pair(k, p[0] + 2, p[0] + 3, T + 1)
        unpack_pair(k, p[2], p[2] + 1, vXold + 2 * j)
        unpack_pair(k, p[2] + 2, p[2] + 3, vXold + 2 * j + 1)
        for r in range(4):
            k.e(f"v_add_f32 {vr(p[0]+r)}, {vr(p[0]+r)}, {vr(p[2]+r)}")
        tt = T + 4 + 2 * (j % 2)
        k.e(f"v_cvt_pk_bf16_f32 {vr(tt)}, {vr(p[0])}, {vr(p[0]+1)}")
        k.e(f"v_cvt_pk_bf16_f32 {vr(tt+1)}, {vr(p[0]+2)}, {vr(p[0]+3)}")
        k.vm(f"buffer_store_dwordx2 {vr(tt,2)}, {vr(vXo)}, s[68:71], s62 offen offset:{32*j}", "st")
    k.stamp_flush(5, slot)
    k.label(end)
    k.e("s_endpgm")
    return k.text() + "\n" + descriptor(name, NV, 64)


def main():
    kernels = []
    launches = []

    def add(text, name, grid, lds):
        kernels.append(".globl %s\n.p2align 8\n.type %s,@function\n" % (name, name) + text)
        launches.append(f"; @launch kernel={name} grid=({grid},1,1) block=(256,1,1) lds={lds}")

    LX = 65536
    LY = 65536
    add(gen_x("k1a1_kernel", "A1", P_AX, 0, True, slot=0), "k1a1_kernel", 256 + 448, LX)
    add(gen_y("k2a2_kernel", "A2", P_AX, 0, P_WS, WS_X1, slot=1), "k2a2_kernel", 256, 98304)
    add(gen_x("k3b1_kernel", "B1", P_WS, WS_X1, False, slot=2), "k3b1_kernel", 224, LX)
    add(gen_y("k4b2_kernel", "B2", P_WS, WS_X1, P_WS, WS_X2, slot=3), "k4b2_kernel", 256, LY)
    add(gen_x("k5a1_kernel", "A1", P_WS, WS_X2, False, slot=4), "k5a1_kernel", 256, LX)
    add(gen_y("k6a2_kernel", "A2", P_WS, WS_X2, P_WS, WS_X3, slot=5), "k6a2_kernel", 256, 98304)
    add(gen_x("k7b1_kernel", "B1", P_WS, WS_X3, False, slot=6), "k7b1_kernel", 224, LX)
    add(gen_y("k8b2_kernel", "B2", P_WS, WS_X3, P_OUT, 0, slot=7), "k8b2_kernel", 256, LY)

    ref = open(f"cdna_kernels/{NAME}.s.ref").read().splitlines()
    head = []
    for line in ref:
        if line.startswith("; @launch"):
            break
        head.append(line)
    out = "\n".join(head) + "\n" + "\n".join(launches) + "\n"
    out += '.amdgcn_target "amdgcn-amd-amdhsa--gfx950"\n.text\n'
    out += "\n".join(kernels)
    dst = sys.argv[1] if len(sys.argv) > 1 else f"cdna_kernels/{NAME}.s"
    open(dst, "w").write(out)
    print("wrote", dst, len(out), "bytes")


if __name__ == "__main__":
    main()
```

```python
import sys

NAME = "interleave_layers__spectral_fnet__dense_activation_squared_relu__prompt"

S, D, F = 2048, 512, 1792

WS_ABT = 0x0000000
WS_H = 0x0400000
WS_X1 = 0x0B00000
WS_X2 = 0x0D00000
WS_X3 = 0x0F00000
WS_W1T = 0x1100000
WS_W2T = 0x1300000
WS_DIAG = 0x2000000
import os
STAMP = bool(os.environ.get("STAMP"))

P_AX, P_SRE, P_SIM, P_HRE, P_HIM, P_BX, P_W1, P_B1, P_W2, P_B2, P_OUT, P_DBG, P_WS = [16 + 2 * i for i in range(13)]


class K:
    def __init__(self, name):
        self.name = name
        self.L = []
        self.vmq = []
        self.lgq = []
        self.nlab = 0

    def e(self, s):
        self.L.append("    " + s)

    def c(self, s):
        self.L.append("    ; " + s)

    def label(self, l):
        self.L.append(l + ":")

    def newlab(self, p="L"):
        self.nlab += 1
        return f".{p}_{self.name}_{self.nlab}"

    def vm(self, s, tag):
        self.e(s)
        self.vmq.append(tag)

    def wait_vm(self, tag):
        idx = None
        for i, t in enumerate(self.vmq):
            if t == tag:
                idx = i
        if idx is None:
            return
        n = len(self.vmq) - 1 - idx
        assert n <= 63, n
        self.e(f"s_waitcnt vmcnt({n})")
        self.vmq = self.vmq[idx + 1:]

    def wait_vm_all(self):
        if self.vmq:
            self.e("s_waitcnt vmcnt(0)")
        self.vmq = []

    def lg(self, s, tag):
        self.e(s)
        self.lgq.append(tag)

    def wait_lg(self, tag):
        idx = None
        for i, t in enumerate(self.lgq):
            if t == tag:
                idx = i
        if idx is None:
            return
        n = len(self.lgq) - 1 - idx
        assert n <= 15, n
        self.e(f"s_waitcnt lgkmcnt({n})")
        self.lgq = self.lgq[idx + 1:]

    def wait_lg_all(self):
        if self.lgq:
            self.e("s_waitcnt lgkmcnt(0)")
        self.lgq = []

    def srd(self, d, ptr, off, nbytes):
        if off:
            self.e(f"s_add_u32 s{d}, s{ptr}, 0x{off:x}")
            self.e(f"s_addc_u32 s{d+1}, s{ptr+1}, 0")
        else:
            self.e(f"s_mov_b32 s{d}, s{ptr}")
            self.e(f"s_mov_b32 s{d+1}, s{ptr+1}")
        self.e(f"s_mov_b32 s{d+2}, 0x{nbytes:x}")
        self.e(f"s_mov_b32 s{d+3}, 0x00020000")

    def load_kernargs(self):
        self.e("s_load_dwordx16 s[16:31], s[0:1], 0")
        self.e("s_load_dwordx8 s[32:39], s[0:1], 64")
        self.e("s_load_dwordx2 s[40:41], s[0:1], 96")

    def stamp(self, i):
        if not STAMP:
            return
        self.e(f"s_memtime s[{80+2*i}:{81+2*i}]")
        self.e("s_waitcnt lgkmcnt(0)")

    def stamp_flush(self, n, slot):
        if not STAMP:
            return
        self.e("s_waitcnt vmcnt(0) lgkmcnt(0)")
        self.e(f"s_memtime s[{80+2*n}:{81+2*n}]")
        self.e("s_waitcnt lgkmcnt(0)")
        self.srd(76, P_WS, WS_DIAG + slot * 0x10000, 0x10000)
        self.e("s_mov_b64 exec, 1")
        for q in range(16):
            self.e(f"v_mov_b32 v{8+q}, s{80+q}")
        self.e("s_lshl_b32 s75, s2, 6")
        self.e("v_mov_b32 v2, 0")
        for q in range(4):
            self.e(f"buffer_store_dwordx4 v[{8+4*q}:{11+4*q}], v2, s[76:79], s75 offen offset:{16*q}")
        self.e("s_waitcnt vmcnt(0)")

    def text(self):
        return "\n".join(self.L)


def vr(a, n=1):
    return f"v{a}" if n == 1 else f"v[{a}:{a+n-1}]"


def ar(a, n=1):
    return f"a{a}" if n == 1 else f"a[{a}:{a+n-1}]"


def descriptor(name, nvgpr, nagpr, nsgpr=100):
    acc = (nvgpr + 3) // 4 * 4
    nfv = acc + nagpr if nagpr else nvgpr
    return f""".section .rodata,"a"
.p2align 6
.amdhsa_kernel {name}
  .amdhsa_next_free_vgpr {nfv}
  .amdhsa_next_free_sgpr {nsgpr}
  .amdhsa_accum_offset {acc}
  .amdhsa_group_segment_fixed_size 0
  .amdhsa_kernarg_size 104
  .amdhsa_user_sgpr_count 2
  .amdhsa_user_sgpr_kernarg_segment_ptr 1
  .amdhsa_system_sgpr_workgroup_id_x 1
  .amdhsa_float_denorm_mode_32 3
.end_amdhsa_kernel
.text
"""


def bf16_round_pair(k, dst, a, b):
    k.e(f"v_cvt_pk_bf16_f32 {vr(dst)}, {vr(a)}, {vr(b)}")


def unpack_pair(k, lo, hi, src):
    k.e(f"v_lshlrev_b32 {vr(lo)}, 16, {vr(src)}")
    k.e(f"v_and_b32 {vr(hi)}, 0xffff0000, {vr(src)}")


def gen_transposer(k, tlab, end, NWG):
    k.label(tlab)
    k.c("transposer: w1 -> w1T, w2 -> w2T")
    k.e("v_lshrrev_b32 v1, 8, v0")
    k.e("s_nop 1")
    k.e("v_readfirstlane_b32 s4, v1")
    k.e("v_and_b32 v0, 255, v0")
    k.e(f"s_sub_u32 s3, s2, {NWG}")
    k.e("s_lshl_b32 s3, s3, 1")
    k.e("s_add_u32 s3, s3, s4")
    k.e("s_cmp_ge_u32 s3, 448")
    k.e(f"s_cbranch_scc1 {end}")
    k.e("s_waitcnt lgkmcnt(0)")
    k.srd(44, P_W1, 0, D * F * 2)
    k.srd(48, P_WS, WS_W1T, D * F * 2)
    k.srd(52, P_W2, 0, D * F * 2)
    k.srd(56, P_WS, WS_W2T, D * F * 2)
    k.e("s_lshr_b32 s4, s3, 6")
    k.e("s_and_b32 s5, s3, 63")
    k.e("s_lshl_b32 s6, s4, 8")
    k.e("v_add_u32 v1, s6, v0")
    k.e("v_lshlrev_b32 v2, 1, v1")
    k.e("s_mul_i32 s7, s5, 0x7000")
    for e_ in range(8):
        k.e(f"s_add_u32 s9, s7, 0x{e_*3584:x}")
        k.vm(f"buffer_load_ushort {vr(8+e_)}, v2, s[44:47], s9 offen", "t1")
    k.e("v_lshrrev_b32 v3, 4, v1")
    k.e("v_lshlrev_b32 v3, 14, v3")
    k.e("v_and_b32 v7, 15, v1")
    k.e("v_lshl_add_u32 v3, v7, 4, v3")
    k.e("s_lshr_b32 s10, s5, 2")
    k.e("s_lshl_b32 s10, s10, 10")
    k.e("s_and_b32 s15, s5, 3")
    k.e("s_lshl_b32 s15, s15, 8")
    k.e("s_add_u32 s10, s10, s15")
    k.e("s_lshr_b32 s11, s3, 1")
    k.e("s_and_b32 s12, s3, 1")
    k.e("s_lshl_b32 s12, s12, 8")
    k.e("v_add_u32 v4, s12, v0")
    k.e("v_lshlrev_b32 v5, 1, v4")
    k.e("s_lshl_b32 s13, s11, 13")
    for e_ in range(8):
        k.e(f"s_add_u32 s9, s13, 0x{e_*1024:x}")
        k.vm(f"buffer_load_ushort {vr(16+e_)}, v5, s[52:55], s9 offen", "t2")
    k.e("v_lshrrev_b32 v6, 4, v4")
    k.e("v_mul_u32_u24 v6, 0xe000, v6")
    k.e("v_and_b32 v7, 15, v4")
    k.e("v_lshl_add_u32 v6, v7, 4, v6")
    k.e("s_lshr_b32 s14, s11, 2")
    k.e("s_lshl_b32 s14, s14, 10")
    k.e("s_and_b32 s15, s11, 3")
    k.e("s_lshl_b32 s15, s15, 8")
    k.e("s_add_u32 s14, s14, s15")
    k.wait_vm("t1")
    for p in range(4):
        k.e(f"v_lshl_or_b32 {vr(24+p)}, {vr(8+2*p+1)}, 16, {vr(8+2*p)}")
    k.vm("buffer_store_dwordx4 v[24:27], v3, s[48:51], s10 offen", "st")
    k.wait_vm("t2")
    for p in range(4):
        k.e(f"v_lshl_or_b32 {vr(28+p)}, {vr(16+2*p+1)}, 16, {vr(16+2*p)}")
    k.vm("buffer_store_dwordx4 v[28:31], v6, s[56:59], s14 offen", "st")


def gen_x(name, kind, x_ptr, x_off, transposer, slot=0):
    k = K(name)
    A1 = kind == "A1"
    WN = 32 if A1 else 64
    nB = WN // 16
    NT = 8 if A1 else 7
    NWG = 32 * NT
    PB = 8 if A1 else 4
    KS = 16

    vLane, vT0, vT1, vT2, vT3 = 1, 2, 3, 4, 5
    vBoff = 10
    vLrd = 14
    vLwr = 18
    vXoff = 22
    vTmp = 24
    BF = 40
    XR = 104
    AF = 104
    EP = 168
    NV = 216

    k.label(name)
    end = k.newlab("end")
    k.load_kernargs()
    if transposer:
        tlab = k.newlab("tr")
        k.e(f"s_cmp_ge_u32 s2, {NWG}")
        k.e(f"s_cbranch_scc1 {tlab}")
    else:
        k.e(f"s_cmp_ge_u32 s2, {NWG}")
        k.e(f"s_cbranch_scc1 {end}")
    k.stamp(0)
    k.e("v_lshrrev_b32 v2, 6, v0")
    k.e("v_and_b32 v1, 63, v0")
    k.e("v_readfirstlane_b32 s3, v2")
    if A1:
        k.e("s_and_b32 s5, s2, 7")
        k.e("s_lshr_b32 s4, s2, 3")
    else:
        k.e("s_mul_i32 s4, s2, 0x4925")
        k.e("s_lshr_b32 s4, s4, 17")
        k.e("s_mul_i32 s6, s4, 7")
        k.e("s_sub_u32 s5, s2, s6")
    k.e("s_waitcnt lgkmcnt(0)")
    k.srd(44, x_ptr, x_off, S * D * 2)
    if A1:
        k.e("s_cmp_lt_u32 s5, 4")
        k.e(f"s_cselect_b32 s48, s{P_HRE}, s{P_HIM}")
        k.e(f"s_cselect_b32 s49, s{P_HRE+1}, s{P_HIM+1}")
        k.e(f"s_mov_b32 s50, 0x{D*D*2:x}")
        k.e("s_mov_b32 s51, 0x00020000")
        k.srd(52, P_WS, WS_ABT, 1024 * S * 2)
        k.e("s_and_b32 s6, s5, 3")
        k.e("s_lshl_b32 s6, s6, 7")
        k.e("s_lshl_b32 s7, s3, 5")
        k.e("s_add_u32 s6, s6, s7")
        k.e("s_lshl_b32 s61, s6, 10")
    else:
        k.srd(48, P_WS, WS_W1T, F * D * 2)
        k.srd(52, P_WS, WS_H, S * F * 2)
        k.srd(56, P_B1, 0, F * 2)
        k.e("s_lshl_b32 s6, s5, 8")
        k.e("s_lshl_b32 s7, s3, 6")
        k.e("s_add_u32 s6, s6, s7")
        k.e("s_lshl_b32 s61, s6, 10")
        k.e("s_lshl_b32 s63, s6, 1")
    k.e("s_lshl_b32 s60, s4, 16")
    k.e("v_and_b32 v2, 15, v1")
    k.e("v_lshrrev_b32 v3, 4, v1")
    if A1:
        k.e("v_lshlrev_b32 v4, 10, v2")
        k.e("v_lshl_add_u32 v4, v3, 4, v4")
    else:
        k.e("v_lshlrev_b32 v4, 4, v1")
    for j in range(nB):
        if j == 0:
            k.e(f"v_mov_b32 {vr(vBoff)}, v4")
        else:
            k.e(f"v_add_u32 {vr(vBoff+j)}, 0x{j*16*1024:x}, v4")
    for s in range(PB):
        for j in range(nB):
            d = BF + ((s % PB) * nB + j) * 4
            if A1:
                k.vm(f"buffer_load_dwordx4 {vr(d,4)}, {vr(vBoff+j)}, s[48:51], s61 offen offset:{s*64}", ("B", s))
            else:
                k.vm(f"buffer_load_dwordx4 {vr(d,4)}, {vr(vBoff+j)}, s[48:51], s61 offen", ("B", s))
        if not A1:
            k.e("s_add_u32 s61, s61, 0x400")
    k.e("v_lshrrev_b32 v2, 2, v1")
    k.e("v_and_b32 v3, 3, v1")
    k.e("v_lshlrev_b32 v4, 10, v2")
    k.e("v_lshl_add_u32 v4, v3, 4, v4")
    k.e("s_lshl_b32 s6, s3, 14")
    k.e(f"v_add_u32 {vr(vXoff)}, s6, v4")
    for j in range(16):
        k.vm(f"buffer_load_dwordx4 {vr(XR+4*j,4)}, {vr(vXoff)}, s[44:47], s60 offen offset:{j*64}", ("X", j))
    k.e(f"v_lshlrev_b32 v5, 4, v3")
    k.e(f"v_sub_u32 v6, {vr(vXoff)}, v5")
    for jj in range(4):
        k.e(f"v_add_u32 v5, {4*jj}, v3")
        k.e("v_xor_b32 v5, v5, v2")
        k.e(f"v_lshl_add_u32 {vr(vLwr+jj)}, v5, 4, v6")
    k.e("v_and_b32 v2, 15, v1")
    k.e("v_lshrrev_b32 v3, 4, v1")
    for ss in range(4):
        k.e(f"v_add_u32 v5, {4*ss}, v3")
        k.e("v_xor_b32 v5, v5, v2")
        k.e("v_lshlrev_b32 v5, 4, v5")
        k.e(f"v_lshl_add_u32 {vr(vLrd+ss)}, v2, 10, v5")
    k.stamp(1)
    k.c("LayerNorm: pass 1 (mean)")
    T = vTmp
    k.e("s_mov_b32 s8, 0x3f803f80")
    for a in range(4):
        k.e(f"v_mov_b32 {vr(T+a)}, 0")
    for q in range(64):
        if q % 4 == 0:
            k.wait_vm(("X", q // 4))
        k.e(f"v_dot2c_f32_bf16 {vr(T+q%4)}, s8, {vr(XR+q)}")
    k.e("s_nop 2")
    k.e(f"v_add_f32 {vr(T)}, {vr(T)}, {vr(T+1)}")
    k.e(f"v_add_f32 {vr(T+2)}, {vr(T+2)}, {vr(T+3)}")
    k.e(f"v_add_f32 {vr(T)}, {vr(T)}, {vr(T+2)}")
    k.e("s_nop 1")
    k.e(f"v_add_f32_dpp {vr(T+1)}, {vr(T)}, {vr(T)} quad_perm:[1,0,3,2] row_mask:0xf bank_mask:0xf")
    k.e("s_nop 1")
    k.e(f"v_add_f32_dpp {vr(T)}, {vr(T+1)}, {vr(T+1)} quad_perm:[2,3,0,1] row_mask:0xf bank_mask:0xf")
    vMean = T + 4
    k.e(f"v_mul_f32 {vr(vMean)}, 0x3b000000, {vr(T)}")
    vNM = T + 6
    k.e(f"v_sub_f32 {vr(vNM)}, 0, {vr(vMean)}")
    k.e(f"v_sub_f32 {vr(vNM+1)}, 0, {vr(vMean)}")
    k.c("LayerNorm: pass 2 (variance)")
    vS = T + 8
    for a in range(4):
        k.e(f"v_mov_b32 {vr(vS+a)}, 0")
    U = T + 12
    for q in range(64):
        u = U + 2 * (q % 2)
        sacc = vS + 2 * (q % 2)
        unpack_pair(k, u, u + 1, XR + q)
        k.e(f"v_pk_add_f32 {vr(u,2)}, {vr(u,2)}, {vr(vNM,2)}")
        k.e(f"v_pk_fma_f32 {vr(sacc,2)}, {vr(u,2)}, {vr(u,2)}, {vr(sacc,2)}")
    k.e(f"v_add_f32 {vr(vS)}, {vr(vS)}, {vr(vS+1)}")
    k.e(f"v_add_f32 {vr(vS+2)}, {vr(vS+2)}, {vr(vS+3)}")
    k.e(f"v_add_f32 {vr(vS)}, {vr(vS)}, {vr(vS+2)}")
    k.e("s_nop 1")
    k.e(f"v_add_f32_dpp {vr(vS+1)}, {vr(vS)}, {vr(vS)} quad_perm:[1,0,3,2] row_mask:0xf bank_mask:0xf")
    k.e("s_nop 1")
    k.e(f"v_add_f32_dpp {vr(vS)}, {vr(vS+1)}, {vr(vS+1)} quad_perm:[2,3,0,1] row_mask:0xf bank_mask:0xf")
    k.e(f"v_mul_f32 {vr(vS)}, 0x3b000000, {vr(vS)}")
    w = vS + 1
    k.e(f"v_cvt_pk_bf16_f32 {vr(w)}, {vr(vS)}, {vr(vMean)}")
    k.e(f"v_lshlrev_b32 {vr(vS+2)}, 16, {vr(w)}")
    k.e(f"v_and_b32 {vr(vS+3)}, 0xffff0000, {vr(w)}")
    k.e(f"v_add_f32 {vr(vS+2)}, 0x3727c5ac, {vr(vS+2)}")
    k.e(f"v_cvt_pk_bf16_f32 {vr(w)}, {vr(vS+2)}, {vr(vS+2)}")
    k.e(f"v_lshlrev_b32 {vr(vS+2)}, 16, {vr(w)}")
    k.e(f"v_sqrt_f32 {vr(vS+2)}, {vr(vS+2)}")
    k.e("s_nop 0")
    k.e(f"v_cvt_pk_bf16_f32 {vr(w)}, {vr(vS+2)}, {vr(vS+2)}")
    k.e(f"v_lshlrev_b32 {vr(vS+2)}, 16, {vr(w)}")
    vR = T + 6
    k.e(f"v_rcp_f32 {vr(vR)}, {vr(vS+2)}")
    k.e("s_nop 0")
    k.e(f"v_mov_b32 {vr(vR+1)}, {vr(vR)}")
    vNC = T + 8
    k.e(f"v_mul_f32 {vr(vNC)}, {vr(vS+3)}, {vr(vR)}")
    k.e(f"v_sub_f32 {vr(vNC)}, 0, {vr(vNC)}")
    k.e(f"v_mov_b32 {vr(vNC+1)}, {vr(vNC)}")
    k.c("LayerNorm: pass 3 (normalise, to LDS)")
    for q in range(64):
        u = U + 2 * (q % 2)
        unpack_pair(k, u, u + 1, XR + q)
        k.e(f"v_pk_fma_f32 {vr(u,2)}, {vr(u,2)}, {vr(vR,2)}, {vr(vNC,2)}")
        k.e(f"v_cvt_pk_bf16_f32 {vr(XR+q)}, {vr(u)}, {vr(u+1)}")
        if q % 4 == 3:
            j = q // 4
            k.e("s_nop 0")
            k.lg(f"ds_write_b128 {vr(vLwr+j%4)}, {vr(XR+4*j,4)} offset:{(j//4)*256}", "lnw")
    k.wait_lg_all()
    k.e("s_barrier")
    k.stamp(2)
    k.c("main loop")
    for i in range(4):
        k.lg(f"ds_read_b128 {vr(AF+4*i,4)}, {vr(vLrd+0)} offset:{i*16384}", ("A", 0))
    for s in range(KS):
        cur = AF + 16 * (s % 2)
        nxt = AF + 16 * ((s + 1) % 2)
        if s + 1 < KS:
            for i in range(4):
                k.lg(f"ds_read_b128 {vr(nxt+4*i,4)}, {vr(vLrd+(s+1)%4)} offset:{i*16384+((s+1)//4)*256}", ("A", s + 1))
        k.wait_lg(("A", s))
        k.wait_vm(("B", s))
        bb = BF + (s % PB) * nB * 4
        for j in range(nB):
            for i in range(4):
                acc = (j * 4 + i) * 4
                cc = "0" if s == 0 else ar(acc, 4)
                if A1:
                    k.e(f"v_mfma_f32_16x16x32_bf16 {ar(acc,4)}, {vr(cur+4*i,4)}, {vr(bb+4*j,4)}, {cc}")
                else:
                    k.e(f"v_mfma_f32_16x16x32_bf16 {ar(acc,4)}, {vr(bb+4*j,4)}, {vr(cur+4*i,4)}, {cc}")
        if s + PB < KS:
            for j in range(nB):
                if A1:
                    k.vm(f"buffer_load_dwordx4 {vr(bb+4*j,4)}, {vr(vBoff+j)}, s[48:51], s61 offen offset:{(s+PB)*64}", ("B", s + PB))
                else:
                    k.vm(f"buffer_load_dwordx4 {vr(bb+4*j,4)}, {vr(vBoff+j)}, s[48:51], s61 offen", ("B", s + PB))
            if not A1:
                k.e("s_add_u32 s61, s61, 0x400")
    k.stamp(3)
    k.c("epilogue")
    k.e("v_and_b32 v2, 15, v1")
    k.e("v_lshrrev_b32 v3, 4, v1")
    if A1:
        k.e("v_lshlrev_b32 v4, 4, v2")
        k.e("v_lshrrev_b32 v5, 1, v3")
        k.e("v_lshl_add_u32 v4, v5, 8, v4")
        k.e("v_and_b32 v5, 1, v3")
        k.e("v_lshl_add_u32 v4, v5, 3, v4")
        k.e("s_lshl_b32 s6, s5, 3")
        k.e("s_lshl_b32 s7, s3, 1")
        k.e("s_add_u32 s6, s6, s7")
        k.e("s_lshl_b32 s6, s6, 16")
        k.e("s_lshl_b32 s7, s4, 11")
        k.e("s_add_u32 s64, s6, s7")
        k.e("s_add_u32 s65, s64, 0x10000")
        k.e("s_nop 7")
        k.e("s_nop 7")
        for j in range(nB):
            for i in range(4):
                acc = (j * 4 + i) * 4
                t = EP + 8 * ((j * 4 + i) % 2)
                for r in range(4):
                    k.e(f"v_accvgpr_read_b32 {vr(t+r)}, {ar(acc+r)}")
                k.e(f"v_cvt_pk_bf16_f32 {vr(t+4)}, {vr(t)}, {vr(t+1)}")
                k.e(f"v_cvt_pk_bf16_f32 {vr(t+5)}, {vr(t+2)}, {vr(t+3)}")
                k.vm(f"buffer_store_dwordx2 {vr(t+4,2)}, v4, s[52:55], s{64+j} offen offset:{(i>>1)*1024+(i&1)*512}", "st")
    else:
        k.e("v_lshlrev_b32 v5, 3, v3")
        vBi = EP + 16
        for j in range(4):
            k.vm(f"buffer_load_dwordx2 {vr(vBi+2*j,2)}, v5, s[56:59], s63 offen offset:{32*j}", "bias")
        k.e("v_lshlrev_b32 v4, 4, v2")
        k.e("v_lshrrev_b32 v6, 1, v3")
        k.e("v_lshl_add_u32 v4, v6, 8, v4")
        k.e("v_and_b32 v6, 1, v3")
        k.e("v_lshl_add_u32 v4, v6, 3, v4")
        k.e("s_mul_i32 s6, s4, 0x38000")
        k.e("s_lshl_b32 s7, s63, 4")
        k.e("s_add_u32 s64, s6, s7")
        for i in range(1, 4):
            k.e(f"s_add_u32 s{64+i}, s64, 0x{i*57344:x}")
        k.wait_vm("bias")
        vBf = EP + 24
        for j in range(4):
            unpack_pair(k, vBf + 4 * j, vBf + 4 * j + 1, vBi + 2 * j)
            unpack_pair(k, vBf + 4 * j + 2, vBf + 4 * j + 3, vBi + 2 * j + 1)
        k.e("s_nop 7")
        for j in range(nB):
            for i in range(4):
                acc = (j * 4 + i) * 4
                t = EP + 8 * ((j * 4 + i) % 2)
                for r in range(4):
                    k.e(f"v_accvgpr_read_b32 {vr(t+r)}, {ar(acc+r)}")
                k.e(f"v_cvt_pk_bf16_f32 {vr(t+4)}, {vr(t)}, {vr(t+1)}")
                k.e(f"v_cvt_pk_bf16_f32 {vr(t+5)}, {vr(t+2)}, {vr(t+3)}")
                unpack_pair(k, t, t + 1, t + 4)
                unpack_pair(k, t + 2, t + 3, t + 5)
                for r in range(4):
                    k.e(f"v_add_f32 {vr(t+r)}, {vr(t+r)}, {vr(vBf+4*j+r)}")
                k.e(f"v_cvt_pk_bf16_f32 {vr(t+4)}, {vr(t)}, {vr(t+1)}")
                k.e(f"v_cvt_pk_bf16_f32 {vr(t+5)}, {vr(t+2)}, {vr(t+3)}")
                unpack_pair(k, t, t + 1, t + 4)
                unpack_pair(k, t + 2, t + 3, t + 5)
                for r in range(4):
                    k.e(f"v_max_f32 {vr(t+r)}, 0, {vr(t+r)}")
                for r in range(4):
                    k.e(f"v_mul_f32 {vr(t+r)}, {vr(t+r)}, {vr(t+r)}")
                k.e(f"v_cvt_pk_bf16_f32 {vr(t+4)}, {vr(t)}, {vr(t+1)}")
                k.e(f"v_cvt_pk_bf16_f32 {vr(t+5)}, {vr(t+2)}, {vr(t+3)}")
                k.vm(f"buffer_store_dwordx2 {vr(t+4,2)}, v4, s[52:55], s{64+i} offen offset:{(j>>1)*1024+(j&1)*512}", "st")
    k.stamp_flush(4, slot)
    k.e(f"s_branch {end}")
    if transposer:
        gen_transposer(k, tlab, end, NWG)
    k.label(end)
    k.e("s_endpgm")
    return k.text() + "\n" + descriptor(name, NV, 64)


def gen_x2(name, kind, x_ptr, x_off, transposer, slot=0):
    k = K(name)
    A1 = kind == "A1"
    WN = 32 if A1 else 64
    nB = WN // 16
    NT = 8 if A1 else 7
    NWG = 32 * NT
    PB = 3
    NS = 4
    KS = 16

    vBoff = 10
    vRdB = 14
    vLrd = 16
    vWe, vWo = 20, 21
    vXoff = 22
    T = 24
    BF = 40
    XR = 88
    DD = 120
    AF = 88
    EP = 120
    NV = 184

    k.label(name)
    end = k.newlab("end")
    k.load_kernargs()
    if transposer:
        tlab = k.newlab("tr")
        k.e(f"s_cmp_ge_u32 s2, {NWG}")
        k.e(f"s_cbranch_scc1 {tlab}")
    else:
        k.e(f"s_cmp_ge_u32 s2, {NWG}")
        k.e(f"s_cbranch_scc1 {end}")
    k.stamp(0)
    k.e("v_lshrrev_b32 v2, 6, v0")
    k.e("v_and_b32 v1, 63, v0")
    k.e("v_readfirstlane_b32 s3, v2")
    if A1:
        k.e("s_and_b32 s5, s2, 7")
        k.e("s_lshr_b32 s4, s2, 3")
    else:
        k.e("s_mul_i32 s4, s2, 0x4925")
        k.e("s_lshr_b32 s4, s4, 17")
        k.e("s_mul_i32 s6, s4, 7")
        k.e("s_sub_u32 s5, s2, s6")
    k.e("v_lshrrev_b32 v2, 3, v1")
    k.e("v_and_b32 v3, 7, v1")
    k.e("v_lshlrev_b32 v4, 10, v2")
    k.e("v_lshl_add_u32 v4, v3, 4, v4")
    k.e("s_lshl_b32 s6, s3, 13")
    k.e(f"v_add_u32 {vr(vXoff)}, s6, v4")
    k.e("s_lshl_b32 s60, s4, 16")
    k.e("s_waitcnt lgkmcnt(0)")
    k.srd(44, x_ptr, x_off, S * D * 2)
    for q in range(8):
        k.vm(f"buffer_load_dwordx4 {vr(XR+4*q,4)}, {vr(vXoff)}, s[44:47], s60 offen offset:{q*128}", ("X", q))
    skipb = k.newlab("skipb")
    k.e("s_cmp_ge_u32 s3, 4")
    k.e(f"s_cbranch_scc1 {skipb}")
    k.e("v_and_b32 v5, 15, v1")
    k.e("v_lshrrev_b32 v6, 4, v1")
    if A1:
        k.e("s_cmp_lt_u32 s5, 4")
        k.e(f"s_cselect_b32 s48, s{P_HRE}, s{P_HIM}")
        k.e(f"s_cselect_b32 s49, s{P_HRE+1}, s{P_HIM+1}")
        k.e(f"s_mov_b32 s50, 0x{D*D*2:x}")
        k.e("s_mov_b32 s51, 0x00020000")
        k.srd(52, P_WS, WS_ABT, 1024 * S * 2)
        k.e("s_and_b32 s6, s5, 3")
        k.e("s_lshl_b32 s6, s6, 7")
        k.e("s_lshl_b32 s7, s3, 5")
        k.e("s_add_u32 s6, s6, s7")
        k.e("s_lshl_b32 s61, s6, 10")
        k.e("v_xor_b32 v7, v3, v6")
        k.e("v_lshl_add_u32 v8, v7, 4, v4")
        k.e("v_lshlrev_b32 v8, 10, v2")
        k.e("v_lshl_add_u32 v9, v7, 4, v8")
        k.e("v_xor_b32 v7, 4, v7")
        k.e("v_lshl_add_u32 v8, v7, 4, v8")
        for u in range(4):
            k.e(f"v_add_u32 {vr(vBoff+u)}, 0x{u*8192:x}, {'v9' if u % 2 == 0 else 'v8'}")
        k.e("s_lshl_b32 s72, s3, 14")
        k.e("s_add_u32 s72, s72, 0x10000")
        k.e("v_lshrrev_b32 v7, 1, v5")
        k.e("v_xor_b32 v7, v7, v6")
        k.e("v_lshlrev_b32 v7, 4, v7")
        k.e("v_and_b32 v8, 7, v5")
        k.e("v_lshl_add_u32 v7, v8, 7, v7")
        k.e("v_lshrrev_b32 v8, 3, v5")
        k.e("v_lshl_add_u32 v7, v8, 10, v7")
        k.e(f"v_add_u32 {vr(vRdB)}, s72, v7")
        k.e(f"v_xor_b32 {vr(vRdB+1)}, 64, {vr(vRdB)}")
    else:
        k.srd(48, P_WS, WS_W1T, F * D * 2)
        k.srd(52, P_WS, WS_H, S * F * 2)
        k.srd(56, P_B1, 0, F * 2)
        k.e("s_lshl_b32 s6, s5, 8")
        k.e("s_lshl_b32 s7, s3, 6")
        k.e("s_add_u32 s6, s6, s7")
        k.e("s_lshl_b32 s61, s6, 10")
        k.e("s_lshl_b32 s63, s6, 1")
        k.e("v_lshlrev_b32 v7, 4, v1")
        for j in range(nB):
            k.e(f"v_add_u32 {vr(vBoff+j)}, 0x{j*16*1024:x}, v7")

    def dma(st):
        for u in range(4):
            k.e(f"s_add_u32 m0, s72, 0x{(st % NS) * 4096 + u * 1024:x}")
            k.e("s_nop 0")
            k.vm(f"buffer_load_dwordx4 {vr(vBoff+u)}, s[48:51], s61 offen lds", ("D", st))
        k.e("s_add_u32 s61, s61, 0x80")

    def bload(t):
        b = BF + (t % PB) * 16
        for j in range(nB):
            k.vm(f"buffer_load_dwordx4 {vr(b+4*j,4)}, {vr(vBoff+j)}, s[48:51], s61 offen", ("B", t))
        k.e("s_add_u32 s61, s61, 0x400")

    for ss in range(4):
        k.e(f"v_add_u32 v7, {4*ss}, v6")
        k.e("v_xor_b32 v7, v7, v5")
        k.e("v_lshlrev_b32 v7, 4, v7")
        k.e(f"v_lshl_add_u32 {vr(vLrd+ss)}, v5, 10, v7")
    k.label(skipb)
    k.e("v_xor_b32 v7, v3, v2")
    k.e("v_lshlrev_b32 v7, 4, v7")
    k.e("v_lshl_add_u32 v7, v2, 10, v7")
    k.e("s_and_b32 s7, s3, 1")
    k.e("s_lshl_b32 s7, s7, 7")
    k.e("s_lshl_b32 s6, s3, 13")
    k.e("s_add_u32 s8, s6, s7")
    k.e("s_sub_u32 s9, s6, s7")
    k.e(f"v_add_u32 {vr(vWe)}, s8, v7")
    k.e(f"v_add_u32 {vr(vWo)}, s9, v7")
    k.stamp(1)
    k.e("s_mov_b32 s8, 0x3f803f80")
    for a in range(4):
        k.e(f"v_mov_b32 {vr(T+a)}, 0")
    for q in range(32):
        if q % 4 == 0:
            xwait(k, q // 4)
        k.e(f"v_dot2c_f32_bf16 {vr(T+q%4)}, s8, {vr(XR+q)}")
    k.stamp(5)
    k.e("s_nop 2")
    pf = []
    if A1:
        for st in range(NS):
            for u in range(4):
                pf.append(("D", st, u))
    else:
        for t in range(PB):
            for j in range(nB):
                pf.append(("B", t, j))

    def pf_issue(op):
        lab = k.newlab("pf")
        k.e("s_cmp_ge_u32 s3, 4")
        k.e(f"s_cbranch_scc1 {lab}")
        kind_, a_, b_ = op
        if kind_ == "D":
            k.e(f"s_add_u32 m0, s72, 0x{(a_ % NS) * 4096 + b_ * 1024:x}")
            k.e("s_nop 0")
            k.vm(f"buffer_load_dwordx4 {vr(vBoff+b_)}, s[48:51], s61 offen lds", ("D", a_))
            if b_ == 3:
                k.e("s_add_u32 s61, s61, 0x80")
        else:
            bb_ = BF + (a_ % PB) * 16
            k.vm(f"buffer_load_dwordx4 {vr(bb_+4*b_,4)}, {vr(vBoff+b_)}, s[48:51], s61 offen", ("B", a_))
            if b_ == nB - 1:
                k.e("s_add_u32 s61, s61, 0x400")
        k.label(lab)

    skip2 = k.newlab("skip2")
    k.e("s_cmp_ge_u32 s3, 4")
    k.e(f"s_cbranch_scc1 {skip2}")
    if A1:
        for st in range(NS):
            dma(st)
    else:
        for t in range(PB):
            bload(t)
    k.label(skip2)
    k.e(f"v_add_f32 {vr(T)}, {vr(T)}, {vr(T+1)}")
    k.e(f"v_add_f32 {vr(T+2)}, {vr(T+2)}, {vr(T+3)}")
    k.e(f"v_add_f32 {vr(T)}, {vr(T)}, {vr(T+2)}")
    red8(k, T)
    vMean = T + 4
    k.e(f"v_mul_f32 {vr(vMean)}, 0x3b000000, {vr(T)}")
    vNM = T + 6
    k.e(f"v_sub_f32 {vr(vNM)}, 0, {vr(vMean)}")
    k.e(f"v_sub_f32 {vr(vNM+1)}, 0, {vr(vMean)}")
    vS = T + 8
    for a in range(4):
        k.e(f"v_mov_b32 {vr(vS+a)}, 0")
    for q in range(32):
        u = DD + 2 * q
        sacc = vS + 2 * (q % 2)
        unpack_pair(k, u, u + 1, XR + q)
        k.e(f"v_pk_add_f32 {vr(u,2)}, {vr(u,2)}, {vr(vNM,2)}")
        k.e(f"v_pk_fma_f32 {vr(sacc,2)}, {vr(u,2)}, {vr(u,2)}, {vr(sacc,2)}")
    k.e(f"v_add_f32 {vr(vS)}, {vr(vS)}, {vr(vS+1)}")
    k.e(f"v_add_f32 {vr(vS+2)}, {vr(vS+2)}, {vr(vS+3)}")
    k.e(f"v_add_f32 {vr(vS)}, {vr(vS)}, {vr(vS+2)}")
    red8(k, vS)
    k.stamp(6)
    k.e(f"v_mul_f32 {vr(vS)}, 0x3b000000, {vr(vS)}")
    w = vS + 1
    k.e(f"v_cvt_pk_bf16_f32 {vr(w)}, {vr(vS)}, {vr(vMean)}")
    k.e(f"v_lshlrev_b32 {vr(vS+2)}, 16, {vr(w)}")
    k.e(f"v_and_b32 {vr(vS+3)}, 0xffff0000, {vr(w)}")
    k.e(f"v_add_f32 {vr(vS+2)}, 0x3727c5ac, {vr(vS+2)}")
    k.e(f"v_cvt_pk_bf16_f32 {vr(w)}, {vr(vS+2)}, {vr(vS+2)}")
    k.e(f"v_lshlrev_b32 {vr(vS+2)}, 16, {vr(w)}")
    k.e(f"v_sqrt_f32 {vr(vS+2)}, {vr(vS+2)}")
    k.e("s_nop 0")
    k.e(f"v_cvt_pk_bf16_f32 {vr(w)}, {vr(vS+2)}, {vr(vS+2)}")
    k.e(f"v_lshlrev_b32 {vr(vS+2)}, 16, {vr(w)}")
    vR = T + 6
    k.e(f"v_rcp_f32 {vr(vR)}, {vr(vS+2)}")
    k.e("s_nop 0")
    k.e(f"v_mov_b32 {vr(vR+1)}, {vr(vR)}")
    vNC = T + 12
    k.e(f"v_sub_f32 {vr(vNC)}, {vr(vMean)}, {vr(vS+3)}")
    k.e(f"v_mul_f32 {vr(vNC)}, {vr(vNC)}, {vr(vR)}")
    k.e(f"v_mov_b32 {vr(vNC+1)}, {vr(vNC)}")
    for q in range(32):
        u = DD + 2 * q
        k.e(f"v_pk_fma_f32 {vr(u,2)}, {vr(u,2)}, {vr(vR,2)}, {vr(vNC,2)}")
        k.e(f"v_cvt_pk_bf16_f32 {vr(XR+q)}, {vr(u)}, {vr(u+1)}")
        if q % 4 == 3:
            j = q // 4
            k.e("s_nop 0")
            k.lg(f"ds_write_b128 {vr(vWe if j % 2 == 0 else vWo)}, {vr(XR+4*j,4)} offset:{j*128}", "lnw")
    k.wait_lg_all()
    k.e("s_barrier")
    k.e("s_cmp_ge_u32 s3, 4")
    k.e(f"s_cbranch_scc1 {end}")
    k.stamp(2)
    BR = BF

    def bread(t):
        b = BR + (t % 2) * 8
        st = t >> 1
        for j in range(nB):
            k.lg(f"ds_read_b128 {vr(b+4*j,4)}, {vr(vRdB + (t & 1))} offset:{(st % NS) * 4096 + j * 2048}", ("A", t))

    for i in range(4):
        k.lg(f"ds_read_b128 {vr(AF+4*i,4)}, {vr(vLrd+0)} offset:{i*16384}", ("A", 0))
    if A1:
        k.wait_vm(("D", 0))
        bread(0)
    for s in range(KS):
        cur = AF + 16 * (s % 2)
        nxt = AF + 16 * ((s + 1) % 2)
        if s + 1 < KS:
            for i in range(4):
                k.lg(f"ds_read_b128 {vr(nxt+4*i,4)}, {vr(vLrd+(s+1)%4)} offset:{i*16384+((s+1)//4)*256}", ("A", s + 1))
            if A1:
                if (s + 1) % 2 == 0:
                    k.wait_vm(("D", (s + 1) // 2))
                bread(s + 1)
        k.wait_lg(("A", s))
        if A1:
            bb = BR + (s % 2) * 8
        else:
            k.wait_vm(("B", s))
            bb = BF + (s % PB) * 16
        for j in range(nB):
            for i in range(4):
                acc = (j * 4 + i) * 4
                cc = "0" if s == 0 else ar(acc, 4)
                if A1:
                    k.e(f"v_mfma_f32_16x16x32_bf16 {ar(acc,4)}, {vr(cur+4*i,4)}, {vr(bb+4*j,4)}, {cc}")
                else:
                    k.e(f"v_mfma_f32_16x16x32_bf16 {ar(acc,4)}, {vr(bb+4*j,4)}, {vr(cur+4*i,4)}, {cc}")
        if A1:
            if s % 2 == 1 and (s >> 1) + NS < KS // 2:
                dma((s >> 1) + NS)
        elif s + PB < KS:
            bload(s + PB)
    k.stamp(3)
    k.e("v_and_b32 v2, 15, v1")
    k.e("v_lshrrev_b32 v3, 4, v1")
    k.e("v_lshlrev_b32 v4, 4, v2")
    k.e("v_lshrrev_b32 v5, 1, v3")
    k.e("v_lshl_add_u32 v4, v5, 8, v4")
    k.e("v_and_b32 v5, 1, v3")
    k.e("v_lshl_add_u32 v4, v5, 3, v4")
    if A1:
        k.e("s_lshl_b32 s6, s5, 3")
        k.e("s_lshl_b32 s7, s3, 1")
        k.e("s_add_u32 s6, s6, s7")
        k.e("s_lshl_b32 s6, s6, 16")
        k.e("s_lshl_b32 s7, s4, 11")
        k.e("s_add_u32 s64, s6, s7")
        k.e("s_add_u32 s65, s64, 0x10000")
        k.e("s_nop 7")
        k.e("s_nop 7")
        for j in range(nB):
            for i in range(4):
                acc = (j * 4 + i) * 4
                t = EP + 8 * ((j * 4 + i) % 2)
                for r in range(4):
                    k.e(f"v_accvgpr_read_b32 {vr(t+r)}, {ar(acc+r)}")
                k.e(f"v_cvt_pk_bf16_f32 {vr(t+4)}, {vr(t)}, {vr(t+1)}")
                k.e(f"v_cvt_pk_bf16_f32 {vr(t+5)}, {vr(t+2)}, {vr(t+3)}")
                k.vm(f"buffer_store_dwordx2 {vr(t+4,2)}, v4, s[52:55], s{64+j} offen offset:{(i>>1)*1024+(i&1)*512}", "st")
    else:
        k.e("v_lshlrev_b32 v5, 3, v3")
        vBi = EP + 16
        for j in range(4):
            k.vm(f"buffer_load_dwordx2 {vr(vBi+2*j,2)}, v5, s[56:59], s63 offen offset:{32*j}", "bias")
        k.e("s_mul_i32 s6, s4, 0x38000")
        k.e("s_lshl_b32 s7, s63, 4")
        k.e("s_add_u32 s64, s6, s7")
        for i in range(1, 4):
            k.e(f"s_add_u32 s{64+i}, s64, 0x{i*57344:x}")
        k.wait_vm("bias")
        vBf = EP + 24
        for j in range(4):
            unpack_pair(k, vBf + 4 * j, vBf + 4 * j + 1, vBi + 2 * j)
            unpack_pair(k, vBf + 4 * j + 2, vBf + 4 * j + 3, vBi + 2 * j + 1)
        k.e("s_nop 7")
        for j in range(nB):
            for i in range(4):
                acc = (j * 4 + i) * 4
                t = EP + 8 * ((j * 4 + i) % 2)
                for r in range(4):
                    k.e(f"v_accvgpr_read_b32 {vr(t+r)}, {ar(acc+r)}")
                k.e(f"v_cvt_pk_bf16_f32 {vr(t+4)}, {vr(t)}, {vr(t+1)}")
                k.e(f"v_cvt_pk_bf16_f32 {vr(t+5)}, {vr(t+2)}, {vr(t+3)}")
                unpack_pair(k, t, t + 1, t + 4)
                unpack_pair(k, t + 2, t + 3, t + 5)
                k.e(f"v_pk_add_f32 {vr(t,2)}, {vr(t,2)}, {vr(vBf+4*j,2)}")
                k.e(f"v_pk_add_f32 {vr(t+2,2)}, {vr(t+2,2)}, {vr(vBf+4*j+2,2)}")
                k.e(f"v_cvt_pk_bf16_f32 {vr(t+4)}, {vr(t)}, {vr(t+1)}")
                k.e(f"v_cvt_pk_bf16_f32 {vr(t+5)}, {vr(t+2)}, {vr(t+3)}")
                k.e(f"v_pk_max_i16 {vr(t+4)}, {vr(t+4)}, 0")
                k.e(f"v_pk_max_i16 {vr(t+5)}, {vr(t+5)}, 0")
                unpack_pair(k, t, t + 1, t + 4)
                unpack_pair(k, t + 2, t + 3, t + 5)
                k.e(f"v_pk_mul_f32 {vr(t,2)}, {vr(t,2)}, {vr(t,2)}")
                k.e(f"v_pk_mul_f32 {vr(t+2,2)}, {vr(t+2,2)}, {vr(t+2,2)}")
                k.e(f"v_cvt_pk_bf16_f32 {vr(t+4)}, {vr(t)}, {vr(t+1)}")
                k.e(f"v_cvt_pk_bf16_f32 {vr(t+5)}, {vr(t+2)}, {vr(t+3)}")
                k.vm(f"buffer_store_dwordx2 {vr(t+4,2)}, v4, s[52:55], s{64+i} offen offset:{(j>>1)*1024+(j&1)*512}", "st")
    k.stamp_flush(4, slot)
    k.e(f"s_branch {end}")
    if transposer:
        gen_transposer(k, tlab, end, NWG)
    k.label(end)
    k.e("s_endpgm")
    return k.text() + "\n" + descriptor(name, NV, 64 if not A1 else 32)


def xwait(k, q):
    k.e(f"s_waitcnt vmcnt({XW(k, q)})")


def XW(k, q):
    return 7 - q


def red8(k, r):
    k.e("s_nop 1")
    k.e(f"v_add_f32_dpp {vr(r+1)}, {vr(r)}, {vr(r)} quad_perm:[1,0,3,2] row_mask:0xf bank_mask:0xf")
    k.e("s_nop 1")
    k.e(f"v_add_f32_dpp {vr(r)}, {vr(r+1)}, {vr(r+1)} quad_perm:[2,3,0,1] row_mask:0xf bank_mask:0xf")
    k.e("s_nop 1")
    k.e(f"v_add_f32_dpp {vr(r+1)}, {vr(r)}, {vr(r)} row_half_mirror row_mask:0xf bank_mask:0xf")
    k.e(f"v_mov_b32 {vr(r)}, {vr(r+1)}")


def gen_y(name, kind, x_ptr, x_off, o_ptr, o_off, P=5, slot=0):
    k = K(name)
    A2 = kind == "A2"
    pitch = 4096 if A2 else 3584
    KS = 32 if A2 else 14
    NWG = 256
    vAoff = 2
    vBoff = 6
    vXo = 16
    vXold = 24
    vBias = 32
    vLane = 1
    FB = 40
    NV = FB + P * 32
    assert NV <= 256
    EPV = FB

    k.label(name)
    end = k.newlab("end")
    k.load_kernargs()
    k.e(f"s_cmp_ge_u32 s2, {NWG}")
    k.e(f"s_cbranch_scc1 {end}")
    k.stamp(0)
    k.e("v_lshrrev_b32 v2, 6, v0")
    k.e("v_and_b32 v1, 63, v0")
    k.e("v_readfirstlane_b32 s3, v2")
    k.e("s_and_b32 s6, s2, 7")
    k.e("s_lshr_b32 s7, s2, 3")
    k.e("s_lshr_b32 s4, s7, 3")
    k.e("s_lshl_b32 s6, s6, 2")
    k.e("s_add_u32 s4, s4, s6")
    k.e("s_and_b32 s5, s7, 7")
    k.e("s_waitcnt lgkmcnt(0)")
    k.stamp(7)
    if A2:
        k.e("s_cmp_lt_u32 s3, 2")
        k.e(f"s_cselect_b32 s44, s{P_SRE}, s{P_SIM}")
        k.e(f"s_cselect_b32 s45, s{P_SRE+1}, s{P_SIM+1}")
        k.e(f"s_mov_b32 s46, 0x{S*S*2:x}")
        k.e("s_mov_b32 s47, 0x00020000")
        k.srd(48, P_WS, WS_ABT, 1024 * S * 2)
        k.e("s_and_b32 s6, s3, 1")
        k.e("s_lshl_b32 s6, s6, 11")
        k.e("s_lshl_b32 s7, s4, 18")
        k.e("s_add_u32 s60, s6, s7")
        k.e("s_lshr_b32 s8, s3, 1")
        k.e("s_lshl_b32 s8, s8, 21")
        k.e("s_lshl_b32 s9, s5, 18")
        k.e("s_add_u32 s8, s8, s9")
        k.e("s_lshl_b32 s9, s6, 4")
        k.e("s_add_u32 s61, s8, s9")
    else:
        k.srd(44, P_WS, WS_H, S * F * 2)
        k.srd(48, P_WS, WS_W2T, D * F * 2)
        k.srd(56, P_B2, 0, D * 2)
        k.e("s_mul_i32 s6, s3, 0x3800")
        k.e("s_mul_i32 s7, s4, 0x38000")
        k.e("s_add_u32 s60, s6, s7")
        k.e("s_mul_i32 s7, s5, 0x38000")
        k.e("s_add_u32 s61, s6, s7")
    k.srd(64, x_ptr, x_off, S * D * 2)
    k.srd(68, o_ptr, o_off, S * D * 2)
    k.e("v_and_b32 v10, 15, v1")
    k.e("v_lshrrev_b32 v11, 4, v1")
    k.e("v_lshlrev_b32 v12, 12, v10")
    k.e("v_lshl_add_u32 v12, v11, 4, v12")
    k.e("v_lshlrev_b32 v17, 4, v1")
    for i in range(4):
        if A2:
            k.e(f"v_add_u32 {vr(vAoff+i)}, 0x{i*16*pitch:x}, v12")
        else:
            k.e(f"v_add_u32 {vr(vAoff+i)}, 0x{i*16*pitch:x}, v17")
        k.e(f"v_add_u32 {vr(vBoff+i)}, 0x{i*16*pitch:x}, v17")

    def issue(s):
        b = FB + (s % P) * 32
        for i in range(4):
            if A2:
                k.vm(f"buffer_load_dwordx4 {vr(b+4*i,4)}, {vr(vAoff+i)}, s[44:47], s60 offen offset:{s*64}", ("AB", s))
            else:
                k.vm(f"buffer_load_dwordx4 {vr(b+4*i,4)}, {vr(vAoff+i)}, s[44:47], s60 offen", ("AB", s))
        for j in range(4):
            k.vm(f"buffer_load_dwordx4 {vr(b+16+4*j,4)}, {vr(vBoff+j)}, s[48:51], s61 offen", ("AB", s))
        if not A2:
            k.e("s_add_u32 s60, s60, 0x400")
        k.e("s_add_u32 s61, s61, 0x400")

    NS = 3
    PB = 4
    vDma = FB + 96
    vRd = FB + 104
    AFR = FB
    BFR = FB + 32

    def dma(st):
        for u in range(8):
            k.e(f"s_add_u32 m0, s72, 0x{(st % NS) * 8192 + u * 1024:x}")
            k.e("s_nop 0")
            k.vm(f"buffer_load_dwordx4 {vr(vDma+u)}, s[44:47], s60 offen lds", ("D", st))
        k.e("s_add_u32 s60, s60, 0x80")

    def bload(t):
        b = BFR + (t % PB) * 16
        for j in range(4):
            k.vm(f"buffer_load_dwordx4 {vr(b+4*j,4)}, {vr(vBoff+j)}, s[48:51], s61 offen", ("B", t))
        k.e("s_add_u32 s61, s61, 0x400")

    def aread(t):
        a = AFR + (t % 2) * 16
        st = t >> 1
        for i in range(4):
            k.lg(f"ds_read_b128 {vr(a+4*i,4)}, {vr(vRd + (t & 1))} offset:{(st % NS) * 8192 + i * 2048}", ("A", t))

    if A2:
        k.e("v_lshrrev_b32 v13, 3, v1")
        k.e("v_and_b32 v14, 7, v1")
        k.e("v_lshrrev_b32 v15, 4, v1")
        k.e("v_xor_b32 v14, v14, v15")
        k.e("v_lshlrev_b32 v13, 12, v13")
        k.e("v_lshl_add_u32 v15, v14, 4, v13")
        k.e("v_xor_b32 v14, 4, v14")
        k.e("v_lshl_add_u32 v14, v14, 4, v13")
        for u in range(8):
            k.e(f"v_add_u32 {vr(vDma+u)}, 0x{u*32768:x}, {'v15' if u % 2 == 0 else 'v14'}")
        k.e("s_mul_i32 s72, s3, %d" % (NS * 8192))
        k.e("v_lshrrev_b32 v13, 1, v10")
        k.e("v_xor_b32 v13, v13, v11")
        k.e("v_lshlrev_b32 v13, 4, v13")
        k.e("v_and_b32 v14, 7, v10")
        k.e("v_lshl_add_u32 v13, v14, 7, v13")
        k.e("v_lshrrev_b32 v14, 3, v10")
        k.e("v_lshl_add_u32 v13, v14, 10, v13")
        k.e(f"v_add_u32 {vr(vRd)}, s72, v13")
        k.e(f"v_xor_b32 {vr(vRd+1)}, 64, {vr(vRd)}")
        for st in range(NS):
            dma(st)
        for t in range(PB):
            bload(t)
    else:
        for s in range(min(P, KS)):
            issue(s)
    k.e("v_lshlrev_b32 v13, 10, v10")
    k.e("v_lshl_add_u32 v13, v11, 3, v13")
    k.e(f"v_mov_b32 {vr(vXo)}, v13")
    k.e("s_lshl_b32 s6, s4, 16")
    k.e("s_lshl_b32 s7, s3, 14")
    k.e("s_add_u32 s6, s6, s7")
    k.e("s_lshl_b32 s7, s5, 7")
    k.e("s_add_u32 s62, s6, s7")
    for j in range(4):
        k.vm(f"buffer_load_dwordx2 {vr(vXold+2*j,2)}, {vr(vXo)}, s[64:67], s62 offen offset:{32*j}", "xold")
    if not A2:
        k.e("v_lshlrev_b32 v14, 3, v11")
        k.e("s_lshl_b32 s63, s5, 7")
        for j in range(4):
            k.vm(f"buffer_load_dwordx2 {vr(vBias+2*j,2)}, v14, s[56:59], s63 offen offset:{32*j}", "bias")
    if A2:
        k.wait_vm(("D", 0))
        k.stamp(1)
        aread(0)
        for t in range(KS):
            if t + 1 < KS:
                if (t + 1) % 2 == 0:
                    k.wait_vm(("D", (t + 1) // 2))
                aread(t + 1)
            k.wait_lg(("A", t))
            k.wait_vm(("B", t))
            if t == KS // 2:
                k.stamp(2)
            a = AFR + (t % 2) * 16
            b = BFR + (t % PB) * 16
            for j in range(4):
                for i in range(4):
                    acc = (j * 4 + i) * 4
                    cc = "0" if t == 0 else ar(acc, 4)
                    k.e(f"v_mfma_f32_16x16x32_bf16 {ar(acc,4)}, {vr(b+4*j,4)}, {vr(a+4*i,4)}, {cc}")
            if t % 2 == 1 and (t >> 1) + NS < KS // 2:
                dma((t >> 1) + NS)
            if t + PB < KS:
                bload(t + PB)
        k.e("s_barrier")
    for s in range(KS if not A2 else 0):
        k.wait_vm(("AB", s))
        if s == 0:
            k.stamp(1)
        if s == KS // 2:
            k.stamp(2)
        b = FB + (s % P) * 32
        for j in range(4):
            for i in range(4):
                acc = (j * 4 + i) * 4
                cc = "0" if s == 0 else ar(acc, 4)
                k.e(f"v_mfma_f32_16x16x32_bf16 {ar(acc,4)}, {vr(b+16+4*j,4)}, {vr(b+4*i,4)}, {cc}")
        if s + P < KS:
            issue(s + P)
    k.stamp(3)
    k.c("reduction")
    k.e("v_lshlrev_b32 v13, 4, v1")
    k.e("s_lshl_b32 s6, s3, 12")
    k.e("v_add_u32 v14, s6, v13")
    k.e("s_lshl_b32 s7, s3, 14")
    k.e("v_add_u32 v15, s7, v13")
    k.e("s_nop 7")
    k.e("s_nop 3")
    for i in range(4):
        for j in range(4):
            acc = (j * 4 + i) * 4
            k.lg(f"ds_write_b128 v14, {ar(acc,4)} offset:{i*16384+j*1024}", "rw")
    k.wait_lg_all()
    k.e("s_barrier")
    k.stamp(4)
    R = EPV
    for w_ in range(4):
        for j in range(4):
            k.lg(f"ds_read_b128 {vr(R+(w_*4+j)*4,4)}, v15 offset:{w_*4096+j*1024}", ("rr", w_, j))
    k.wait_vm("bias")
    k.wait_vm("xold")
    T = EPV + 64
    for j in range(4):
        k.wait_lg(("rr", 3, j))
        p = [R + (w_ * 4 + j) * 4 for w_ in range(4)]
        if A2:
            for r in range(4):
                k.e(f"v_add_f32 {vr(p[0]+r)}, {vr(p[0]+r)}, {vr(p[1]+r)}")
                k.e(f"v_add_f32 {vr(p[2]+r)}, {vr(p[2]+r)}, {vr(p[3]+r)}")
            k.e(f"v_cvt_pk_bf16_f32 {vr(T)}, {vr(p[0])}, {vr(p[0]+1)}")
            k.e(f"v_cvt_pk_bf16_f32 {vr(T+1)}, {vr(p[0]+2)}, {vr(p[0]+3)}")
            k.e(f"v_cvt_pk_bf16_f32 {vr(T+2)}, {vr(p[2])}, {vr(p[2]+1)}")
            k.e(f"v_cvt_pk_bf16_f32 {vr(T+3)}, {vr(p[2]+2)}, {vr(p[2]+3)}")
            unpack_pair(k, p[0], p[0] + 1, T)
            unpack_pair(k, p[0] + 2, p[0] + 3, T + 1)
            unpack_pair(k, p[2], p[2] + 1, T + 2)
            unpack_pair(k, p[2] + 2, p[2] + 3, T + 3)
            for r in range(4):
                k.e(f"v_sub_f32 {vr(p[0]+r)}, {vr(p[0]+r)}, {vr(p[2]+r)}")
            k.e(f"v_cvt_pk_bf16_f32 {vr(T)}, {vr(p[0])}, {vr(p[0]+1)}")
            k.e(f"v_cvt_pk_bf16_f32 {vr(T+1)}, {vr(p[0]+2)}, {vr(p[0]+3)}")
        else:
            for r in range(4):
                k.e(f"v_add_f32 {vr(p[0]+r)}, {vr(p[0]+r)}, {vr(p[1]+r)}")
                k.e(f"v_add_f32 {vr(p[2]+r)}, {vr(p[2]+r)}, {vr(p[3]+r)}")
            for r in range(4):
                k.e(f"v_add_f32 {vr(p[0]+r)}, {vr(p[0]+r)}, {vr(p[2]+r)}")
            k.e(f"v_cvt_pk_bf16_f32 {vr(T)}, {vr(p[0])}, {vr(p[0]+1)}")
            k.e(f"v_cvt_pk_bf16_f32 {vr(T+1)}, {vr(p[0]+2)}, {vr(p[0]+3)}")
            unpack_pair(k, p[0], p[0] + 1, T)
            unpack_pair(k, p[0] + 2, p[0] + 3, T + 1)
            unpack_pair(k, p[2], p[2] + 1, vBias + 2 * j)
            unpack_pair(k, p[2] + 2, p[2] + 3, vBias + 2 * j + 1)
            for r in range(4):
                k.e(f"v_add_f32 {vr(p[0]+r)}, {vr(p[0]+r)}, {vr(p[2]+r)}")
            k.e(f"v_cvt_pk_bf16_f32 {vr(T)}, {vr(p[0])}, {vr(p[0]+1)}")
            k.e(f"v_cvt_pk_bf16_f32 {vr(T+1)}, {vr(p[0]+2)}, {vr(p[0]+3)}")
        unpack_pair(k, p[0], p[0] + 1, T)
        unpack_pair(k, p[0] + 2, p[0] + 3, T + 1)
        unpack_pair(k, p[2], p[2] + 1, vXold + 2 * j)
        unpack_pair(k, p[2] + 2, p[2] + 3, vXold + 2 * j + 1)
        for r in range(4):
            k.e(f"v_add_f32 {vr(p[0]+r)}, {vr(p[0]+r)}, {vr(p[2]+r)}")
        tt = T + 4 + 2 * (j % 2)
        k.e(f"v_cvt_pk_bf16_f32 {vr(tt)}, {vr(p[0])}, {vr(p[0]+1)}")
        k.e(f"v_cvt_pk_bf16_f32 {vr(tt+1)}, {vr(p[0]+2)}, {vr(p[0]+3)}")
        k.vm(f"buffer_store_dwordx2 {vr(tt,2)}, {vr(vXo)}, s[68:71], s62 offen offset:{32*j}", "st")
    k.stamp_flush(5, slot)
    k.label(end)
    k.e("s_endpgm")
    return k.text() + "\n" + descriptor(name, NV, 64)


def main():
    kernels = []
    launches = []

    def add(text, name, grid, lds, block=256):
        kernels.append(".globl %s\n.p2align 8\n.type %s,@function\n" % (name, name) + text)
        launches.append(f"; @launch kernel={name} grid=({grid},1,1) block=({block},1,1) lds={lds}")

    LX = 65536
    LY = 65536
    add(gen_x2("k1a1_kernel", "A1", P_AX, 0, True, slot=0), "k1a1_kernel", 256 + 224, 131072, 512)
    add(gen_y("k2a2_kernel", "A2", P_AX, 0, P_WS, WS_X1, slot=1), "k2a2_kernel", 256, 98304)
    add(gen_x2("k3b1_kernel", "B1", P_WS, WS_X1, False, slot=2), "k3b1_kernel", 224, LX, 512)
    add(gen_y("k4b2_kernel", "B2", P_WS, WS_X1, P_WS, WS_X2, slot=3), "k4b2_kernel", 256, LY)
    add(gen_x2("k5a1_kernel", "A1", P_WS, WS_X2, False, slot=4), "k5a1_kernel", 256, 131072, 512)
    add(gen_y("k6a2_kernel", "A2", P_WS, WS_X2, P_WS, WS_X3, slot=5), "k6a2_kernel", 256, 98304)
    add(gen_x2("k7b1_kernel", "B1", P_WS, WS_X3, False, slot=6), "k7b1_kernel", 224, LX, 512)
    add(gen_y("k8b2_kernel", "B2", P_WS, WS_X3, P_OUT, 0, slot=7), "k8b2_kernel", 256, LY)

    ref = open(f"cdna_kernels/{NAME}.s.ref").read().splitlines()
    head = []
    for line in ref:
        if line.startswith("; @launch"):
            break
        head.append(line)
    out = "\n".join(head) + "\n" + "\n".join(launches) + "\n"
    out += '.amdgcn_target "amdgcn-amd-amdhsa--gfx950"\n.text\n'
    out += "\n".join(kernels)
    dst = sys.argv[1] if len(sys.argv) > 1 else f"cdna_kernels/{NAME}.s"
    open(dst, "w").write(out)
    print("wrote", dst, len(out), "bytes")


if __name__ == "__main__":
    main()
```
